```python
import torch

def _softmax(x, axis=-1):
    return torch.softmax(x, dim=axis)
def _gelu(x):
    return torch.nn.functional.gelu(x, approximate="tanh")
def _silu(x):
    return torch.nn.functional.silu(x)
def _sigmoid(x):
    return torch.sigmoid(x)
def _layernorm(x, axis=-1, eps=1e-5):
    m = x.mean(dim=axis, keepdim=True)
    v = x.var(dim=axis, keepdim=True, unbiased=False)
    return (x - m) / torch.sqrt(v + eps)
def _scatter_add(tgt, idx, src, axis=0):
    return tgt.clone().index_add_(axis, idx, src)
def _segment_sum(src, seg, n):
    out = torch.zeros((n,) + src.shape[1:], dtype=src.dtype)
    return out.index_add_(0, seg, src)
def _pad(x, pw):
    flat = tuple(v for pair in reversed(pw) for v in pair)
    return torch.nn.functional.pad(x, flat)

kernel_name = 'standalone__dense_activation_squared_relu__prompt'

def setup_inputs():

    _w = (lambda a: (lambda t: t.to(torch.bfloat16) if t.is_floating_point() else t)(torch.as_tensor(a)))
    B, S, D, F = 1, 2048, 640, 1728
    return {
        "x": _w((lambda *s: torch.randn(*s, dtype=torch.bfloat16) * 0.05)(B, S, D)),
        "w1": _w((lambda *s: torch.randn(*s, dtype=torch.bfloat16) * 0.05)(D, F)),
        "b1": _w((lambda *s: torch.randn(*s, dtype=torch.bfloat16) * 0.05)(F)),
        "w2": _w((lambda *s: torch.randn(*s, dtype=torch.bfloat16) * 0.05)(F, D)),
        "b2": _w((lambda *s: torch.randn(*s, dtype=torch.bfloat16) * 0.05)(D)),
    }

def reference(x, w1, b1, w2, b2):
    h = torch.einsum("bsd,df->bsf", x, w1) + b1
    zero = torch.zeros_like(h)
    r = torch.where(h > zero, h, zero)
    h = r * r
    out = torch.einsum("bsf,fd->bsd", h, w2) + b2
    return out
```

```python
import sys

M, D, F = 2048, 640, 1728
OUT = "standalone__dense_activation_squared_relu__prompt.s"
K1 = "standalone__dense_activation_squared_relu__prompt_kernel"
K2 = "mlp_gemm2_kernel"


class Asm:
    def __init__(self):
        self.l = []
        self.vm = []
        self.lg = []

    def e(self, s):
        self.l.append("    " + s)

    def label(self, s):
        self.l.append(s + ":")

    def c(self, s):
        self.l.append("    ; " + s)

    def vmem(self, s, tag):
        self.e(s)
        self.vm.append(tag)
        assert len(self.vm) <= 63, "vmcnt overflow %d" % len(self.vm)

    def wait_vm(self, tags, extra=""):
        idx = -1
        for i, t in enumerate(self.vm):
            if t in tags:
                idx = i
        if idx < 0:
            return
        n = len(self.vm) - 1 - idx
        self.e("s_waitcnt vmcnt(%d)%s" % (n, extra))
        self.vm = self.vm[idx + 1:]

    def lds(self, s, tag):
        self.e(s)
        self.lg.append(tag)
        assert len(self.lg) <= 15, "lgkmcnt overflow"

    def wait_lg(self, tags=None):
        if tags is None:
            if self.lg:
                self.e("s_waitcnt lgkmcnt(0)")
            self.lg = []
            return
        idx = -1
        for i, t in enumerate(self.lg):
            if t in tags:
                idx = i
        if idx < 0:
            return
        n = len(self.lg) - 1 - idx
        self.e("s_waitcnt lgkmcnt(%d)" % n)
        self.lg = self.lg[idx + 1:]

    def text(self):
        return "\n".join(self.l) + "\n"


def v(i, n=1):
    return "v%d" % i if n == 1 else "v[%d:%d]" % (i, i + n - 1)


def a(i, n=1):
    return "a%d" % i if n == 1 else "a[%d:%d]" % (i, i + n - 1)


def s(i, n=1):
    return "s%d" % i if n == 1 else "s[%d:%d]" % (i, i + n - 1)


def srd(A, sreg, karg_off, nbytes):
    A.e("s_mov_b32 %s, %d" % (s(sreg + 2), nbytes))
    A.e("s_mov_b32 %s, 0x00020000" % s(sreg + 3))


def swap23(A, dst, src, t1, t2):
    A.e("v_and_b32 %s, 4, %s" % (v(t1), v(src)))
    A.e("v_lshlrev_b32 %s, 1, %s" % (v(t1), v(t1)))
    A.e("v_and_b32 %s, 8, %s" % (v(t2), v(src)))
    A.e("v_lshrrev_b32 %s, 1, %s" % (v(t2), v(t2)))
    A.e("v_and_b32 %s, 0xfffffff3, %s" % (v(dst), v(src)))
    A.e("v_or3_b32 %s, %s, %s, %s" % (v(dst), v(dst), v(t1), v(t2)))


def gen_k1(A):
    NU = 7
    BN = NU * 16
    ROWB = BN * 2
    PPR = ROWB // 16
    KS = D // 32
    CH_KS = 4
    NCH = KS // CH_KS
    CH_ROWS = 32 * CH_KS
    CH_BYTES = CH_ROWS * ROWB
    DMA_PER_WAVE = CH_ROWS * PPR // 64 // 4
    assert DMA_PER_WAVE * 4 * 64 == CH_ROWS * PPR
    LDS_BYTES = NCH * CH_BYTES
    A.lds_bytes_k1 = LDS_BYTES

    S_X, S_W, S_B, S_H = 4, 8, 12, 16
    sXCD, sQ, sMB, sJ, sU, sN0B, sWAVE, sROW, sT0, sT1, sM0B = 20, 21, 22, 24, 26, 27, 28, 29, 30, 31, 32
    sCH = 33
    vLANE, vI, vG = 1, 2, 3
    vA0, vA1 = 4, 5
    vDMA = 6
    vBR = 13
    vH0, vH1, vBI = 16, 17, 18
    vT = 20
    vBIASRAW = 28
    vBIAS = 42
    vACC = 72
    vBF = 128
    aA = 0

    A.l.append(".globl %s" % K1)
    A.l.append(".p2align 8")
    A.l.append(".type %s,@function" % K1)
    A.label(K1)
    A.e("s_cmp_ge_u32 s2, 256")
    A.e("s_cbranch_scc1 .Lk1_end")
    A.e("s_load_dwordx2 s[4:5], s[0:1], 0")
    A.e("s_load_dwordx2 s[8:9], s[0:1], 8")
    A.e("s_load_dwordx2 s[12:13], s[0:1], 16")
    A.e("s_load_dwordx2 s[16:17], s[0:1], 56")
    A.e("s_and_b32 %s, s2, 7" % s(sXCD))
    A.e("s_lshr_b32 %s, s2, 3" % s(sQ))
    A.e("s_lshr_b32 %s, %s, 1" % (s(sMB), s(sXCD)))
    A.e("s_lshl_b32 %s, %s, 2" % (s(sMB), s(sMB)))
    A.e("s_lshr_b32 %s, %s, 3" % (s(sT0), s(sQ)))
    A.e("s_add_u32 %s, %s, %s" % (s(sMB), s(sMB), s(sT0)))
    A.e("s_and_b32 %s, %s, 1" % (s(sJ), s(sXCD)))
    A.e("s_lshl_b32 %s, %s, 3" % (s(sJ), s(sJ)))
    A.e("s_and_b32 %s, %s, 7" % (s(sT0), s(sQ)))
    A.e("s_add_u32 %s, %s, %s" % (s(sJ), s(sJ), s(sT0)))
    A.e("s_mul_i32 %s, %s, 27" % (s(sU), s(sJ)))
    A.e("s_lshr_b32 %s, %s, 2" % (s(sU), s(sU)))
    A.e("s_lshl_b32 %s, %s, 5" % (s(sN0B), s(sU)))
    A.e("v_lshrrev_b32 %s, 6, v0" % v(vT))
    A.e("v_and_b32 %s, 63, v0" % v(vLANE))
    A.e("s_nop 0")
    A.e("v_readfirstlane_b32 %s, %s" % (s(sWAVE), v(vT)))
    A.e("v_and_b32 %s, 15, %s" % (v(vI), v(vLANE)))
    A.e("v_lshrrev_b32 %s, 4, %s" % (v(vG), v(vLANE)))
    A.e("s_waitcnt lgkmcnt(0)")
    srd(A, S_X, 0, M * D * 2)
    srd(A, S_W, 8, D * F * 2)
    srd(A, S_B, 16, F * 2)
    srd(A, S_H, 56, M * F * 2)
    A.e("s_lshl_b32 %s, %s, 7" % (s(sROW), s(sMB)))
    A.e("s_lshl_b32 %s, %s, 5" % (s(sT0), s(sWAVE)))
    A.e("s_add_u32 %s, %s, %s" % (s(sROW), s(sROW), s(sT0)))
    A.e("v_lshlrev_b32 %s, 3, %s" % (v(vBI), v(vG)))
    A.e("v_add_u32 %s, %s, %s" % (v(vBI), s(sN0B), v(vBI)))
    for nb in range(NU):
        A.vmem("buffer_load_dwordx2 %s, %s, %s, 0 offen offset:%d" %
               (v(vBIASRAW + 2 * nb, 2), v(vBI), s(S_B, 4), nb * 32), "bias")
    for e in range(DMA_PER_WAVE):
        A.e("s_mul_i32 %s, %s, %d" % (s(sT0), s(sWAVE), 64 * DMA_PER_WAVE))
        A.e("s_add_u32 %s, %s, %d" % (s(sT0), s(sT0), 64 * e))
        A.e("v_add_u32 %s, %s, %s" % (v(vT), s(sT0), v(vLANE)))
        magic = (65536 + PPR - 1) // PPR
        A.e("v_mul_u32_u24 %s, %d, %s" % (v(vT + 1), magic, v(vT)))
        A.e("v_lshrrev_b32 %s, 16, %s" % (v(vT + 1), v(vT + 1)))
        A.e("v_mul_u32_u24 %s, %d, %s" % (v(vT + 2), PPR, v(vT + 1)))
        A.e("v_sub_u32 %s, %s, %s" % (v(vT + 2), v(vT), v(vT + 2)))
        swap23(A, vT + 3, vT + 1, vT + 4, vT + 5)
        A.e("v_mul_u32_u24 %s, %d, %s" % (v(vDMA + e), F * 2, v(vT + 3)))
        A.e("v_lshl_add_u32 %s, %s, 4, %s" % (v(vDMA + e), v(vT + 2), v(vDMA + e)))
        A.e("v_add_u32 %s, %s, %s" % (v(vDMA + e), s(sN0B), v(vDMA + e)))
    A.e("v_add_u32 %s, %s, %s" % (v(vA0), s(sROW), v(vI)))
    A.e("v_mul_u32_u24 %s, %d, %s" % (v(vA0), D * 2, v(vA0)))
    A.e("v_lshl_add_u32 %s, %s, 4, %s" % (v(vA0), v(vG), v(vA0)))
    A.e("v_add_u32 %s, %d, %s" % (v(vA1), 16 * D * 2, v(vA0)))
    A.e("s_mul_i32 %s, %s, %d" % (s(sM0B), s(sWAVE), DMA_PER_WAVE * 1024))

    def issue_chunk(t):
        A.c("---- issue loads chunk %d" % t)
        A.e("s_mov_b32 %s, %d" % (s(sCH), t * CH_ROWS * F * 2))
        for e in range(DMA_PER_WAVE):
            A.e("s_add_u32 m0, %s, %d" % (s(sM0B), t * CH_BYTES + e * 1024))
            A.e("s_nop 0")
            A.vmem("buffer_load_dwordx4 %s, %s, %s offen lds" % (v(vDMA + e), s(S_W, 4), s(sCH)), ("c", t))
        for kk in range(CH_KS):
            ks = t * CH_KS + kk
            for f in range(2):
                A.vmem("buffer_load_dwordx4 %s, %s, %s, 0 offen offset:%d" %
                       (a(aA + (ks * 2 + f) * 4, 4), v(vA0 + f), s(S_X, 4), ks * 64), ("c", t))

    PRE = 3
    for t in range(min(PRE, NCH)):
        issue_chunk(t)

    A.e("v_lshrrev_b32 %s, 1, %s" % (v(vT), v(vG)))
    A.e("v_lshlrev_b32 %s, 4, %s" % (v(vT), v(vT)))
    A.e("v_and_b32 %s, 1, %s" % (v(vT + 1), v(vG)))
    A.e("v_lshl_add_u32 %s, %s, 2, %s" % (v(vT), v(vT + 1), v(vT)))
    A.e("v_lshrrev_b32 %s, 2, %s" % (v(vT + 1), v(vI)))
    A.e("v_add_u32 %s, %s, %s" % (v(vT), v(vT), v(vT + 1)))
    A.e("v_mul_u32_u24 %s, %d, %s" % (v(vT), ROWB, v(vT)))
    A.e("v_and_b32 %s, 3, %s" % (v(vT + 1), v(vI)))
    A.e("v_lshl_add_u32 %s, %s, 3, %s" % (v(vBR), v(vT + 1), v(vT)))
    A.e("v_add_u32 %s, %d, %s" % (v(vBR + 1), 2 * CH_BYTES, v(vBR)))
    A.e("v_add_u32 %s, %d, %s" % (v(vBR + 2), 4 * CH_BYTES, v(vBR)))
    A.e("v_add_u32 %s, %s, %s" % (v(vH0), s(sROW), v(vI)))
    A.e("v_mul_u32_u24 %s, %d, %s" % (v(vH0), F * 2, v(vH0)))
    A.e("v_add_u32 %s, %s, %s" % (v(vH0), v(vBI), v(vH0)))
    A.e("v_add_u32 %s, %d, %s" % (v(vH1), 16 * F * 2, v(vH0)))
    A.wait_vm({"bias"})
    for nb in range(NU):
        for hlf in range(2):
            src = vBIASRAW + 2 * nb + hlf
            A.e("v_lshlrev_b32 %s, 16, %s" % (v(vBIAS + 4 * nb + 2 * hlf), v(src)))
            A.e("v_and_b32 %s, 0xffff0000, %s" % (v(vBIAS + 4 * nb + 2 * hlf + 1), v(src)))

    def tr_addr(ks, nb, p):
        t = ks // CH_KS
        base = vBR + t // 2
        off = (t % 2) * CH_BYTES + (ks % CH_KS) * 32 * ROWB + p * 8 * ROWB + nb * 32
        assert off < 65536
        return base, off

    def issue_tr(ks, nb, p):
        base, off = tr_addr(ks, nb, p)
        dst = vBF + (ks & 1) * 28 + nb * 4 + 2 * p
        A.lds("ds_read_b64_tr_b16 %s, %s offset:%d" % (v(dst, 2), v(base), off), ("b", ks))

    A.wait_vm({("c", 0)})
    A.e("s_barrier")
    if PRE < NCH:
        issue_chunk(PRE)
    for nb in range(NU):
        for p in range(2):
            issue_tr(0, nb, p)
    A.wait_lg()

    for ks in range(KS):
        A.c("==== k-step %d" % ks)
        nxt = ks + 1
        if nxt < KS and nxt % CH_KS == 0:
            t = nxt // CH_KS
            A.wait_vm({("c", t)})
            A.e("s_barrier")
            if t + PRE < NCH:
                issue_chunk(t + PRE)
        reads = [(nb, p) for nb in range(NU) for p in range(2)] if nxt < KS else []
        mf = [(nb, f) for nb in range(NU) for f in range(2)]
        for idx, (nb, f) in enumerate(mf):
            acc = vACC + (f * NU + nb) * 4
            cop = v(vBIAS + 4 * nb, 4) if ks == 0 else v(acc, 4)
            A.e("v_mfma_f32_16x16x32_bf16 %s, %s, %s, %s" %
                (v(acc, 4), v(vBF + (ks & 1) * 28 + nb * 4, 4), a(aA + (ks * 2 + f) * 4, 4), cop))
            if idx < len(reads):
                issue_tr(nxt, reads[idx][0], reads[idx][1])
        A.wait_lg()

    A.c("==== epilogue")
    A.e("s_nop 7")
    A.e("s_nop 7")
    A.e("s_and_b32 %s, %s, 3" % (s(sT0), s(sJ)))
    for nb in range(NU):
        if nb == NU - 1:
            A.e("s_cmp_eq_u32 %s, 0" % s(sT0))
            A.e("s_cbranch_scc1 .Lk1_done")
        for f in range(2):
            acc = vACC + (f * NU + nb) * 4
            for r in range(4):
                A.e("v_max_f32 %s, 0, %s" % (v(acc + r), v(acc + r)))
            A.e("v_pk_mul_f32 %s, %s, %s" % (v(acc, 2), v(acc, 2), v(acc, 2)))
            A.e("v_pk_mul_f32 %s, %s, %s" % (v(acc + 2, 2), v(acc + 2, 2), v(acc + 2, 2)))
            A.e("v_cvt_pk_bf16_f32 %s, %s, %s" % (v(acc), v(acc), v(acc + 1)))
            A.e("v_cvt_pk_bf16_f32 %s, %s, %s" % (v(acc + 1), v(acc + 2), v(acc + 3)))
            A.e("buffer_store_dwordx2 %s, %s, %s, 0 offen offset:%d" %
                (v(acc, 2), v(vH0 + f), s(S_H, 4), nb * 32))
    A.label(".Lk1_done")
    A.e("s_waitcnt vmcnt(0)")
    A.label(".Lk1_end")
    A.e("s_endpgm")
    A.vm = []
    A.lg = []


def gen_k2(A):
    NU = 5
    BN = NU * 16
    ROWB = BN * 2
    PPR = ROWB // 16
    KS = F // 32
    CH_KS = 4
    CH_ROWS = 128
    NCH = (KS + CH_KS - 1) // CH_KS
    CH_BYTES = CH_ROWS * ROWB
    DMA_PER_WAVE = CH_ROWS * PPR // 64 // 4
    RING = 7
    PRE = 6
    RED_BASE = RING * CH_BYTES
    LDS_BYTES = RED_BASE + 2 * 10240
    A.lds_bytes_k2 = LDS_BYTES
    NWK = KS // 2

    S_H, S_W, S_B, S_O = 4, 8, 12, 16
    sXCD, sQ, sMT, sNT, sN0B, sWAVE, sROW, sT0, sM0B, sCH, sKP = 20, 21, 22, 24, 27, 28, 29, 30, 32, 33, 34
    vLANE, vI, vG = 1, 2, 3
    vA0, vA1 = 4, 5
    vDMA = 6
    vBR = 13
    vO0, vO1, vBI, vRED = 16, 17, 18, 19
    vT = 20
    vBIASRAW = 28
    vBIAS = 42
    vACC = 72
    vBF = 128
    vP = 176
    aA = 0

    A.l.append(".globl %s" % K2)
    A.l.append(".p2align 8")
    A.l.append(".type %s,@function" % K2)
    A.label(K2)
    A.e("s_cmp_ge_u32 s2, 256")
    A.e("s_cbranch_scc1 .Lk2_end")
    A.e("s_load_dwordx2 s[4:5], s[0:1], 56")
    A.e("s_load_dwordx2 s[8:9], s[0:1], 24")
    A.e("s_load_dwordx2 s[12:13], s[0:1], 32")
    A.e("s_load_dwordx2 s[16:17], s[0:1], 40")
    A.e("s_and_b32 %s, s2, 7" % s(sXCD))
    A.e("s_lshr_b32 %s, s2, 3" % s(sQ))
    A.e("s_lshr_b32 %s, %s, 1" % (s(sMT), s(sXCD)))
    A.e("s_lshl_b32 %s, %s, 3" % (s(sMT), s(sMT)))
    A.e("s_lshr_b32 %s, %s, 2" % (s(sT0), s(sQ)))
    A.e("s_add_u32 %s, %s, %s" % (s(sMT), s(sMT), s(sT0)))
    A.e("s_and_b32 %s, %s, 1" % (s(sNT), s(sXCD)))
    A.e("s_lshl_b32 %s, %s, 2" % (s(sNT), s(sNT)))
    A.e("s_and_b32 %s, %s, 3" % (s(sT0), s(sQ)))
    A.e("s_add_u32 %s, %s, %s" % (s(sNT), s(sNT), s(sT0)))
    A.e("s_mul_i32 %s, %s, %d" % (s(sN0B), s(sNT), ROWB))
    A.e("v_lshrrev_b32 %s, 6, v0" % v(vT))
    A.e("v_and_b32 %s, 63, v0" % v(vLANE))
    A.e("s_nop 0")
    A.e("v_readfirstlane_b32 %s, %s" % (s(sWAVE), v(vT)))
    A.e("v_and_b32 %s, 15, %s" % (v(vI), v(vLANE)))
    A.e("v_lshrrev_b32 %s, 4, %s" % (v(vG), v(vLANE)))
    A.e("s_waitcnt lgkmcnt(0)")
    srd(A, S_H, 56, M * F * 2)
    srd(A, S_W, 24, F * D * 2)
    srd(A, S_B, 32, D * 2)
    srd(A, S_O, 40, M * D * 2)
    A.e("s_lshr_b32 %s, %s, 1" % (s(sKP), s(sWAVE)))
    A.e("s_and_b32 %s, %s, 1" % (s(sT0), s(sWAVE)))
    A.e("s_lshl_b32 %s, %s, 5" % (s(sT0), s(sT0)))
    A.e("s_lshl_b32 %s, %s, 6" % (s(sROW), s(sMT)))
    A.e("s_add_u32 %s, %s, %s" % (s(sROW), s(sROW), s(sT0)))
    A.e("v_lshlrev_b32 %s, 3, %s" % (v(vBI), v(vG)))
    A.e("v_add_u32 %s, %s, %s" % (v(vBI), s(sN0B), v(vBI)))
    for nb in range(NU):
        A.vmem("buffer_load_dwordx2 %s, %s, %s, 0 offen offset:%d" %
               (v(vBIASRAW + 2 * nb, 2), v(vBI), s(S_B, 4), nb * 32), "bias")
    for e in range(DMA_PER_WAVE):
        A.e("s_mul_i32 %s, %s, %d" % (s(sT0), s(sWAVE), 64 * DMA_PER_WAVE))
        A.e("s_add_u32 %s, %s, %d" % (s(sT0), s(sT0), 64 * e))
        A.e("v_add_u32 %s, %s, %s" % (v(vT), s(sT0), v(vLANE)))
        magic = (65536 + PPR - 1) // PPR
        A.e("v_mul_u32_u24 %s, %d, %s" % (v(vT + 1), magic, v(vT)))
        A.e("v_lshrrev_b32 %s, 16, %s" % (v(vT + 1), v(vT + 1)))
        A.e("v_mul_u32_u24 %s, %d, %s" % (v(vT + 2), PPR, v(vT + 1)))
        A.e("v_sub_u32 %s, %s, %s" % (v(vT + 2), v(vT), v(vT + 2)))
        swap23(A, vT + 3, vT + 1, vT + 4, vT + 5)
        A.e("v_mul_u32_u24 %s, %d, %s" % (v(vDMA + e), D * 2, v(vT + 3)))
        A.e("v_lshl_add_u32 %s, %s, 4, %s" % (v(vDMA + e), v(vT + 2), v(vDMA + e)))
        A.e("v_add_u32 %s, %s, %s" % (v(vDMA + e), s(sN0B), v(vDMA + e)))
    A.e("v_add_u32 %s, %s, %s" % (v(vA0), s(sROW), v(vI)))
    A.e("v_mul_u32_u24 %s, %d, %s" % (v(vA0), F * 2, v(vA0)))
    A.e("v_lshl_add_u32 %s, %s, 4, %s" % (v(vA0), v(vG), v(vA0)))
    A.e("s_lshl_b32 %s, %s, 6" % (s(sT0), s(sKP)))
    A.e("v_add_u32 %s, %s, %s" % (v(vA0), s(sT0), v(vA0)))
    A.e("v_add_u32 %s, %d, %s" % (v(vA1), 16 * F * 2, v(vA0)))
    A.e("s_mul_i32 %s, %s, %d" % (s(sM0B), s(sWAVE), DMA_PER_WAVE * 1024))

    def issue_chunk(t):
        A.c("---- issue loads chunk %d" % t)
        A.e("s_mov_b32 %s, %d" % (s(sCH), t * CH_ROWS * D * 2))
        for e in range(DMA_PER_WAVE):
            A.e("s_add_u32 m0, %s, %d" % (s(sM0B), (t % RING) * CH_BYTES + e * 1024))
            A.e("s_nop 0")
            A.vmem("buffer_load_dwordx4 %s, %s, %s offen lds" % (v(vDMA + e), s(S_W, 4), s(sCH)), ("c", t))
        for half in range(2):
            ks = t * CH_KS + 2 * half
            if ks >= KS:
                continue
            u = 2 * t + half
            for f in range(2):
                A.vmem("buffer_load_dwordx4 %s, %s, %s, 0 offen offset:%d" %
                       (a(aA + (u * 2 + f) * 4, 4), v(vA0 + f), s(S_H, 4), ks * 64), ("c", t))

    for t in range(min(PRE, NCH)):
        issue_chunk(t)

    A.e("v_lshrrev_b32 %s, 1, %s" % (v(vT), v(vG)))
    A.e("v_lshlrev_b32 %s, 4, %s" % (v(vT), v(vT)))
    A.e("v_and_b32 %s, 1, %s" % (v(vT + 1), v(vG)))
    A.e("v_lshl_add_u32 %s, %s, 2, %s" % (v(vT), v(vT + 1), v(vT)))
    A.e("v_lshrrev_b32 %s, 2, %s" % (v(vT + 1), v(vI)))
    A.e("v_add_u32 %s, %s, %s" % (v(vT), v(vT), v(vT + 1)))
    A.e("s_lshl_b32 %s, %s, 5" % (s(sT0), s(sKP)))
    A.e("v_add_u32 %s, %s, %s" % (v(vT), s(sT0), v(vT)))
    A.e("v_mul_u32_u24 %s, %d, %s" % (v(vT), ROWB, v(vT)))
    A.e("v_and_b32 %s, 3, %s" % (v(vT + 1), v(vI)))
    A.e("v_lshl_add_u32 %s, %s, 3, %s" % (v(vBR), v(vT + 1), v(vT)))
    A.e("v_add_u32 %s, %d, %s" % (v(vBR + 1), 3 * CH_BYTES, v(vBR)))
    A.e("v_add_u32 %s, %d, %s" % (v(vBR + 2), 6 * CH_BYTES, v(vBR)))
    A.e("v_add_u32 %s, %s, %s" % (v(vO0), s(sROW), v(vI)))
    A.e("v_mul_u32_u24 %s, %d, %s" % (v(vO0), D * 2, v(vO0)))
    A.e("v_add_u32 %s, %s, %s" % (v(vO0), v(vBI), v(vO0)))
    A.e("v_add_u32 %s, %d, %s" % (v(vO1), 16 * D * 2, v(vO0)))
    A.e("s_and_b32 %s, %s, 1" % (s(sT0), s(sWAVE)))
    A.e("s_mul_i32 %s, %s, 10240" % (s(sT0), s(sT0)))
    A.e("s_add_u32 %s, %s, %d" % (s(sT0), s(sT0), RED_BASE))
    A.e("v_lshlrev_b32 %s, 4, %s" % (v(vRED), v(vLANE)))
    A.e("v_add_u32 %s, %s, %s" % (v(vRED), s(sT0), v(vRED)))
    A.wait_vm({"bias"})
    for nb in range(NU):
        for hlf in range(2):
            src = vBIASRAW + 2 * nb + hlf
            A.e("v_lshlrev_b32 %s, 16, %s" % (v(vBIAS + 4 * nb + 2 * hlf), v(src)))
            A.e("v_and_b32 %s, 0xffff0000, %s" % (v(vBIAS + 4 * nb + 2 * hlf + 1), v(src)))
    A.e("s_cmp_eq_u32 %s, 0" % s(sKP))
    A.e("s_cbranch_scc1 .Lk2_bias_ok")
    for r in range(4 * NU):
        A.e("v_mov_b32 %s, 0" % v(vBIAS + r))
    A.label(".Lk2_bias_ok")

    def issue_tr(u, nb, p):
        t = u // 2
        half = u % 2
        slot = t % RING
        base = vBR + slot // 3
        off = (slot % 3) * CH_BYTES + half * 2 * 32 * ROWB + p * 8 * ROWB + nb * 32
        assert off < 65536
        dst = vBF + (u & 1) * 20 + nb * 4 + 2 * p
        A.lds("ds_read_b64_tr_b16 %s, %s offset:%d" % (v(dst, 2), v(base), off), ("b", u))

    A.wait_vm({("c", 0)})
    A.e("s_barrier")
    if PRE < NCH:
        issue_chunk(PRE)
    for nb in range(NU):
        for p in range(2):
            issue_tr(0, nb, p)
    A.wait_lg()

    for u in range(NWK):
        A.c("==== wave k-step %d" % u)
        nxt = u + 1
        if nxt < NWK and nxt % 2 == 0:
            t = nxt // 2
            A.wait_vm({("c", t)})
            A.e("s_barrier")
            if t + PRE < NCH:
                issue_chunk(t + PRE)
        reads = [(nb, p) for nb in range(NU) for p in range(2)] if nxt < NWK else []
        mf = [(nb, f) for nb in range(NU) for f in range(2)]
        for idx, (nb, f) in enumerate(mf):
            acc = vACC + (f * NU + nb) * 4
            cop = v(vBIAS + 4 * nb, 4) if u == 0 else v(acc, 4)
            A.e("v_mfma_f32_16x16x32_bf16 %s, %s, %s, %s" %
                (v(acc, 4), v(vBF + (u & 1) * 20 + nb * 4, 4), a(aA + (u * 2 + f) * 4, 4), cop))
            if idx < len(reads):
                issue_tr(nxt, reads[idx][0], reads[idx][1])
        A.wait_lg()

    A.c("==== reduction")
    A.e("s_nop 7")
    A.e("s_nop 7")
    A.e("s_cmp_eq_u32 %s, 0" % s(sKP))
    A.e("s_cbranch_scc1 .Lk2_kp0")
    for fr in range(2 * NU):
        A.e("ds_write_b128 %s, %s offset:%d" % (v(vRED), v(vACC + fr * 4, 4), fr * 1024))
    A.e("s_waitcnt lgkmcnt(0)")
    A.e("s_barrier")
    A.e("s_branch .Lk2_end")
    A.label(".Lk2_kp0")
    A.e("s_barrier")
    for fr in range(2 * NU):
        A.e("ds_read_b128 %s, %s offset:%d" % (v(vP + fr * 4, 4), v(vRED), fr * 1024))
    for f in range(2):
        for nb in range(NU):
            fr = f * NU + nb
            acc = vACC + fr * 4
            A.e("s_waitcnt lgkmcnt(%d)" % (2 * NU - 1 - fr))
            A.e("v_pk_add_f32 %s, %s, %s" % (v(acc, 2), v(acc, 2), v(vP + fr * 4, 2)))
            A.e("v_pk_add_f32 %s, %s, %s" % (v(acc + 2, 2), v(acc + 2, 2), v(vP + fr * 4 + 2, 2)))
            A.e("v_cvt_pk_bf16_f32 %s, %s, %s" % (v(acc), v(acc), v(acc + 1)))
            A.e("v_cvt_pk_bf16_f32 %s, %s, %s" % (v(acc + 1), v(acc + 2), v(acc + 3)))
            A.e("buffer_store_dwordx2 %s, %s, %s, 0 offen offset:%d" %
                (v(acc, 2), v(vO0 + f), s(S_O, 4), nb * 32))
    A.e("s_waitcnt vmcnt(0)")
    A.label(".Lk2_end")
    A.e("s_endpgm")
    A.vm = []
    A.lg = []


def kd(name, nvgpr, accum):
    return """.amdhsa_kernel %s
  .amdhsa_next_free_vgpr %d
  .amdhsa_next_free_sgpr 102
  .amdhsa_accum_offset %d
  .amdhsa_group_segment_fixed_size 0
  .amdhsa_kernarg_size 64
  .amdhsa_user_sgpr_count 2
  .amdhsa_user_sgpr_kernarg_segment_ptr 1
  .amdhsa_system_sgpr_workgroup_id_x 1
.end_amdhsa_kernel
""" % (name, nvgpr, accum)


HEADER = """; Kernarg layout for this problem (64 bytes, ptrs only, base s[0:1]):
"""


def main():
    A = Asm()
    gen_k1(A)
    gen_k2(A)
    out = HEADER
    out += "; @launch kernel=%s grid=(256,1,1) block=(256,1,1) lds=%d\n" % (K1, A.lds_bytes_k1)
    out += "; @launch kernel=%s grid=(256,1,1) block=(256,1,1) lds=%d\n" % (K2, A.lds_bytes_k2)
    out += '.amdgcn_target "amdgcn-amd-amdhsa--gfx950"\n.text\n'
    out += A.text()
    out += '.section .rodata,"a"\n.p2align 6\n'
    out += kd(K1, 512, 256)
    out += ".p2align 6\n"
    out += kd(K2, 512, 256)
    path = sys.argv[1] if len(sys.argv) > 1 else OUT
    open(path, "w").write(out)
    print("wrote", path, len(out), "bytes")


if __name__ == "__main__":
    main()
```

```python
import sys

M, D, F = 2048, 640, 1728
OUT = "standalone__dense_activation_squared_relu__prompt.s"
K1 = "standalone__dense_activation_squared_relu__prompt_kernel"
K2 = "mlp_gemm2_kernel"


class Asm:
    def __init__(self):
        self.l = []
        self.vm = []
        self.lg = []
        self.instr = False
        self.instr_wg = 0
        self.instr_id = 0

    def e(self, s):
        self.l.append("    " + s)

    def label(self, s):
        self.l.append(s + ":")

    def c(self, s):
        self.l.append("    ; " + s)

    def vmem(self, s, tag):
        self.e(s)
        self.vm.append(tag)
        assert len(self.vm) <= 63, "vmcnt overflow %d" % len(self.vm)

    def wait_vm(self, tags, extra=""):
        idx = -1
        for i, t in enumerate(self.vm):
            if t in tags:
                idx = i
        if idx < 0:
            return
        n = len(self.vm) - 1 - idx
        self.e("s_waitcnt vmcnt(%d)%s" % (n, extra))
        self.vm = self.vm[idx + 1:]

    def lds(self, s, tag):
        self.e(s)
        self.lg.append(tag)
        assert len(self.lg) <= 15, "lgkmcnt overflow"

    def wait_lg(self, tags=None):
        if tags is None:
            if self.lg:
                self.e("s_waitcnt lgkmcnt(0)")
            self.lg = []
            return
        idx = -1
        for i, t in enumerate(self.lg):
            if t in tags:
                idx = i
        if idx < 0:
            return
        n = len(self.lg) - 1 - idx
        self.e("s_waitcnt lgkmcnt(%d)" % n)
        self.lg = self.lg[idx + 1:]

    def stamp(self, idx):
        if not getattr(self, "instr", False):
            return
        self.e("s_waitcnt lgkmcnt(0)")
        self.lg = []
        self.e("s_memtime s[%d:%d]" % (60 + 2 * idx, 61 + 2 * idx))
        self.e("s_waitcnt lgkmcnt(0)")

    def dump_stamps(self, n, srd_free, vtmp):
        if not getattr(self, "instr", False):
            return
        self.e("s_waitcnt vmcnt(0) lgkmcnt(0)")
        self.e("s_memrealtime s[90:91]")
        self.e("s_waitcnt lgkmcnt(0)")
        self.e("s_load_dwordx2 s[%d:%d], s[0:1], 48" % (srd_free, srd_free + 1))
        self.e("s_waitcnt lgkmcnt(0)")
        self.e("s_mov_b32 s%d, 4096" % (srd_free + 2))
        self.e("s_mov_b32 s%d, 0x00020000" % (srd_free + 3))
        self.e("s_cmp_lg_u32 s2, %d" % self.instr_wg)
        self.e("s_cbranch_scc1 .Lskip_dump%d" % self.instr_id)
        self.e("v_mov_b32 v%d, 0" % vtmp)
        self.e("s_mul_i32 s89, s28, %d" % (n * 4))
        self.e("v_add_u32 v%d, s89, v%d" % (vtmp, vtmp))
        for i in range(n):
            self.e("v_mov_b32 v%d, s%d" % (vtmp + 1, 60 + 2 * i))
            self.e("buffer_store_dword v%d, v%d, s[%d:%d], 0 offen offset:%d" % (vtmp + 1, vtmp, srd_free, srd_free + 3, i * 4))
        self.e("s_waitcnt vmcnt(0)")
        self.label(".Lskip_dump%d" % self.instr_id)
        self.instr_id += 1

    def text(self):
        return "\n".join(self.l) + "\n"


def v(i, n=1):
    return "v%d" % i if n == 1 else "v[%d:%d]" % (i, i + n - 1)


def a(i, n=1):
    return "a%d" % i if n == 1 else "a[%d:%d]" % (i, i + n - 1)


def s(i, n=1):
    return "s%d" % i if n == 1 else "s[%d:%d]" % (i, i + n - 1)


def srd(A, sreg, karg_off, nbytes):
    A.e("s_mov_b32 %s, %d" % (s(sreg + 2), nbytes))
    A.e("s_mov_b32 %s, 0x00020000" % s(sreg + 3))


def swap23(A, dst, src, t1, t2):
    A.e("v_and_b32 %s, 4, %s" % (v(t1), v(src)))
    A.e("v_lshlrev_b32 %s, 1, %s" % (v(t1), v(t1)))
    A.e("v_and_b32 %s, 8, %s" % (v(t2), v(src)))
    A.e("v_lshrrev_b32 %s, 1, %s" % (v(t2), v(t2)))
    A.e("v_and_b32 %s, 0xfffffff3, %s" % (v(dst), v(src)))
    A.e("v_or3_b32 %s, %s, %s, %s" % (v(dst), v(dst), v(t1), v(t2)))


def gen_k1(A):
    NU = 7
    BN = NU * 16
    ROWB = BN * 2
    PPR = ROWB // 16
    KS = D // 32
    CH_KS = 4
    NCH = KS // CH_KS
    CH_ROWS = 32 * CH_KS
    CH_BYTES = CH_ROWS * ROWB
    DMA_PER_WAVE = CH_ROWS * PPR // 64 // 4
    assert DMA_PER_WAVE * 4 * 64 == CH_ROWS * PPR
    LDS_BYTES = NCH * CH_BYTES
    A.lds_bytes_k1 = LDS_BYTES

    S_X, S_W, S_B, S_H = 4, 8, 12, 16
    sXCD, sQ, sMB, sJ, sU, sN0B, sWAVE, sROW, sT0, sT1, sM0B = 20, 21, 22, 24, 26, 27, 28, 29, 30, 31, 32
    sCH = 33
    vLANE, vI, vG = 1, 2, 3
    vA0, vA1 = 4, 5
    vDMA = 6
    vBR = 13
    vH0, vH1, vBI = 16, 17, 18
    vT = 20
    vBIASRAW = 28
    vBIAS = 42
    vACC = 72
    vBF = 128
    aA = 0

    A.l.append(".globl %s" % K1)
    A.l.append(".p2align 8")
    A.l.append(".type %s,@function" % K1)
    A.label(K1)
    A.e("s_cmp_ge_u32 s2, 256")
    A.e("s_cbranch_scc1 .Lk1_end")
    A.stamp(0)
    if A.instr:
        A.e("s_memrealtime s[80:81]")
        A.e("s_waitcnt lgkmcnt(0)")
    A.e("s_load_dwordx2 s[4:5], s[0:1], 0")
    A.e("s_load_dwordx2 s[8:9], s[0:1], 8")
    A.e("s_load_dwordx2 s[12:13], s[0:1], 16")
    A.e("s_load_dwordx2 s[16:17], s[0:1], 56")
    A.e("s_and_b32 %s, s2, 7" % s(sXCD))
    A.e("s_lshr_b32 %s, s2, 3" % s(sQ))
    A.e("s_lshr_b32 %s, %s, 1" % (s(sMB), s(sXCD)))
    A.e("s_lshl_b32 %s, %s, 2" % (s(sMB), s(sMB)))
    A.e("s_lshr_b32 %s, %s, 3" % (s(sT0), s(sQ)))
    A.e("s_add_u32 %s, %s, %s" % (s(sMB), s(sMB), s(sT0)))
    A.e("s_and_b32 %s, %s, 1" % (s(sJ), s(sXCD)))
    A.e("s_lshl_b32 %s, %s, 3" % (s(sJ), s(sJ)))
    A.e("s_and_b32 %s, %s, 7" % (s(sT0), s(sQ)))
    A.e("s_add_u32 %s, %s, %s" % (s(sJ), s(sJ), s(sT0)))
    A.e("s_mul_i32 %s, %s, 27" % (s(sU), s(sJ)))
    A.e("s_lshr_b32 %s, %s, 2" % (s(sU), s(sU)))
    A.e("s_lshl_b32 %s, %s, 5" % (s(sN0B), s(sU)))
    A.e("v_lshrrev_b32 %s, 6, v0" % v(vT))
    A.e("v_and_b32 %s, 63, v0" % v(vLANE))
    A.e("s_nop 0")
    A.e("v_readfirstlane_b32 %s, %s" % (s(sWAVE), v(vT)))
    A.e("v_and_b32 %s, 15, %s" % (v(vI), v(vLANE)))
    A.e("v_lshrrev_b32 %s, 4, %s" % (v(vG), v(vLANE)))
    A.e("s_waitcnt lgkmcnt(0)")
    srd(A, S_X, 0, M * D * 2)
    srd(A, S_W, 8, D * F * 2)
    srd(A, S_B, 16, F * 2)
    srd(A, S_H, 56, M * F * 2)
    A.e("s_lshl_b32 %s, %s, 7" % (s(sROW), s(sMB)))
    A.e("s_lshl_b32 %s, %s, 5" % (s(sT0), s(sWAVE)))
    A.e("s_add_u32 %s, %s, %s" % (s(sROW), s(sROW), s(sT0)))
    A.e("v_lshlrev_b32 %s, 3, %s" % (v(vBI), v(vG)))
    A.e("v_add_u32 %s, %s, %s" % (v(vBI), s(sN0B), v(vBI)))
    for nb in range(NU):
        A.vmem("buffer_load_dwordx2 %s, %s, %s, 0 offen offset:%d" %
               (v(vBIASRAW + 2 * nb, 2), v(vBI), s(S_B, 4), nb * 32), "bias")
    for e in range(DMA_PER_WAVE):
        A.e("s_mul_i32 %s, %s, %d" % (s(sT0), s(sWAVE), 64 * DMA_PER_WAVE))
        A.e("s_add_u32 %s, %s, %d" % (s(sT0), s(sT0), 64 * e))
        A.e("v_add_u32 %s, %s, %s" % (v(vT), s(sT0), v(vLANE)))
        magic = (65536 + PPR - 1) // PPR
        A.e("v_mul_u32_u24 %s, %d, %s" % (v(vT + 1), magic, v(vT)))
        A.e("v_lshrrev_b32 %s, 16, %s" % (v(vT + 1), v(vT + 1)))
        A.e("v_mul_u32_u24 %s, %d, %s" % (v(vT + 2), PPR, v(vT + 1)))
        A.e("v_sub_u32 %s, %s, %s" % (v(vT + 2), v(vT), v(vT + 2)))
        swap23(A, vT + 3, vT + 1, vT + 4, vT + 5)
        A.e("v_mul_u32_u24 %s, %d, %s" % (v(vDMA + e), F * 2, v(vT + 3)))
        A.e("v_lshl_add_u32 %s, %s, 4, %s" % (v(vDMA + e), v(vT + 2), v(vDMA + e)))
        A.e("v_add_u32 %s, %s, %s" % (v(vDMA + e), s(sN0B), v(vDMA + e)))
    A.e("v_add_u32 %s, %s, %s" % (v(vA0), s(sROW), v(vI)))
    A.e("v_mul_u32_u24 %s, %d, %s" % (v(vA0), D * 2, v(vA0)))
    A.e("v_lshl_add_u32 %s, %s, 4, %s" % (v(vA0), v(vG), v(vA0)))
    A.e("v_add_u32 %s, %d, %s" % (v(vA1), 16 * D * 2, v(vA0)))
    A.e("s_mul_i32 %s, %s, %d" % (s(sM0B), s(sWAVE), DMA_PER_WAVE * 1024))

    def issue_chunk(t):
        A.c("---- issue loads chunk %d" % t)
        A.e("s_mov_b32 %s, %d" % (s(sCH), t * CH_ROWS * F * 2))
        for e in range(DMA_PER_WAVE):
            A.e("s_add_u32 m0, %s, %d" % (s(sM0B), t * CH_BYTES + e * 1024))
            A.e("s_nop 0")
            A.vmem("buffer_load_dwordx4 %s, %s, %s offen lds" % (v(vDMA + e), s(S_W, 4), s(sCH)), ("c", t))
        for kk in range(CH_KS):
            ks = t * CH_KS + kk
            for f in range(2):
                A.vmem("buffer_load_dwordx4 %s, %s, %s, 0 offen offset:%d" %
                       (a(aA + (ks * 2 + f) * 4, 4), v(vA0 + f), s(S_X, 4), ks * 64), ("c", t))

    PRE = 3
    for t in range(min(PRE, NCH)):
        issue_chunk(t)

    A.e("v_lshrrev_b32 %s, 1, %s" % (v(vT), v(vG)))
    A.e("v_lshlrev_b32 %s, 4, %s" % (v(vT), v(vT)))
    A.e("v_and_b32 %s, 1, %s" % (v(vT + 1), v(vG)))
    A.e("v_lshl_add_u32 %s, %s, 2, %s" % (v(vT), v(vT + 1), v(vT)))
    A.e("v_lshrrev_b32 %s, 2, %s" % (v(vT + 1), v(vI)))
    A.e("v_add_u32 %s, %s, %s" % (v(vT), v(vT), v(vT + 1)))
    A.e("v_mul_u32_u24 %s, %d, %s" % (v(vT), ROWB, v(vT)))
    A.e("v_and_b32 %s, 3, %s" % (v(vT + 1), v(vI)))
    A.e("v_lshl_add_u32 %s, %s, 3, %s" % (v(vBR), v(vT + 1), v(vT)))
    A.e("v_add_u32 %s, %d, %s" % (v(vBR + 1), 2 * CH_BYTES, v(vBR)))
    A.e("v_add_u32 %s, %d, %s" % (v(vBR + 2), 4 * CH_BYTES, v(vBR)))
    A.e("v_add_u32 %s, %s, %s" % (v(vH0), s(sROW), v(vI)))
    A.e("v_mul_u32_u24 %s, %d, %s" % (v(vH0), F * 2, v(vH0)))
    A.e("v_add_u32 %s, %s, %s" % (v(vH0), v(vBI), v(vH0)))
    A.e("v_add_u32 %s, %d, %s" % (v(vH1), 16 * F * 2, v(vH0)))
    A.stamp(1)
    A.wait_vm({"bias"})
    for nb in range(NU):
        for hlf in range(2):
            src = vBIASRAW + 2 * nb + hlf
            A.e("v_lshlrev_b32 %s, 16, %s" % (v(vBIAS + 4 * nb + 2 * hlf), v(src)))
            A.e("v_and_b32 %s, 0xffff0000, %s" % (v(vBIAS + 4 * nb + 2 * hlf + 1), v(src)))

    def tr_addr(ks, nb, p):
        t = ks // CH_KS
        base = vBR + t // 2
        off = (t % 2) * CH_BYTES + (ks % CH_KS) * 32 * ROWB + p * 8 * ROWB + nb * 32
        assert off < 65536
        return base, off

    def issue_tr(ks, nb, p):
        base, off = tr_addr(ks, nb, p)
        dst = vBF + (ks & 1) * 28 + nb * 4 + 2 * p
        A.lds("ds_read_b64_tr_b16 %s, %s offset:%d" % (v(dst, 2), v(base), off), ("b", ks))

    A.wait_vm({("c", 0)})
    A.e("s_barrier")
    A.stamp(2)
    if PRE < NCH:
        issue_chunk(PRE)
    for nb in range(NU):
        for p in range(2):
            issue_tr(0, nb, p)
    A.wait_lg()

    for ks in range(KS):
        A.c("==== k-step %d" % ks)
        nxt = ks + 1
        if nxt < KS and nxt % CH_KS == 0:
            t = nxt // CH_KS
            A.wait_vm({("c", t)})
            A.e("s_barrier")
            A.stamp(2 + t)
            if t + PRE < NCH:
                issue_chunk(t + PRE)
        reads = [(nb, p) for nb in range(NU) for p in range(2)] if nxt < KS else []
        mf = [(nb, f) for nb in range(NU) for f in range(2)]
        for idx, (nb, f) in enumerate(mf):
            acc = vACC + (f * NU + nb) * 4
            cop = v(vBIAS + 4 * nb, 4) if ks == 0 else v(acc, 4)
            A.e("v_mfma_f32_16x16x32_bf16 %s, %s, %s, %s" %
                (v(acc, 4), v(vBF + (ks & 1) * 28 + nb * 4, 4), a(aA + (ks * 2 + f) * 4, 4), cop))
            if idx < len(reads):
                issue_tr(nxt, reads[idx][0], reads[idx][1])
        A.wait_lg()

    A.c("==== epilogue")
    A.stamp(7)
    A.e("s_nop 7")
    A.e("s_nop 7")
    A.e("s_and_b32 %s, %s, 3" % (s(sT0), s(sJ)))
    for nb in range(NU):
        if nb == NU - 1:
            A.e("s_cmp_eq_u32 %s, 0" % s(sT0))
            A.e("s_cbranch_scc1 .Lk1_done")
        for f in range(2):
            acc = vACC + (f * NU + nb) * 4
            for r in range(4):
                A.e("v_max_f32 %s, 0, %s" % (v(acc + r), v(acc + r)))
            A.e("v_pk_mul_f32 %s, %s, %s" % (v(acc, 2), v(acc, 2), v(acc, 2)))
            A.e("v_pk_mul_f32 %s, %s, %s" % (v(acc + 2, 2), v(acc + 2, 2), v(acc + 2, 2)))
            A.e("v_cvt_pk_bf16_f32 %s, %s, %s" % (v(acc), v(acc), v(acc + 1)))
            A.e("v_cvt_pk_bf16_f32 %s, %s, %s" % (v(acc + 1), v(acc + 2), v(acc + 3)))
            A.e("buffer_store_dwordx2 %s, %s, %s, 0 offen offset:%d" %
                (v(acc, 2), v(vH0 + f), s(S_H, 4), nb * 32))
    A.label(".Lk1_done")
    A.stamp(8)
    A.e("s_waitcnt vmcnt(0)")
    A.stamp(9)
    if A.instr:
        A.e("s_memrealtime s[82:83]")
        A.e("s_waitcnt lgkmcnt(0)")
    A.dump_stamps(12, 40, 20)
    A.label(".Lk1_end")
    A.e("s_endpgm")
    A.vm = []
    A.lg = []


def gen_k2(A):
    NU = 5
    BN = NU * 16
    ROWB = BN * 2
    PPR = ROWB // 16
    KS = F // 32
    CH_KS = 4
    CH_ROWS = 128
    NCH = (KS + CH_KS - 1) // CH_KS
    CH_BYTES = CH_ROWS * ROWB
    DMA_PER_WAVE = CH_ROWS * PPR // 64 // 4
    RING = 7
    PRE = 6
    RED_BASE = RING * CH_BYTES
    LDS_BYTES = RED_BASE + 2 * 10240
    A.lds_bytes_k2 = LDS_BYTES
    NWK = KS // 2

    S_H, S_W, S_B, S_O = 4, 8, 12, 16
    sXCD, sQ, sMT, sNT, sN0B, sWAVE, sROW, sT0, sM0B, sCH, sKP = 20, 21, 22, 24, 27, 28, 29, 30, 32, 33, 34
    vLANE, vI, vG = 1, 2, 3
    vA0, vA1 = 4, 5
    vDMA = 6
    vBR = 13
    vO0, vO1, vBI, vRED = 16, 17, 18, 19
    vT = 20
    vBIASRAW = 28
    vBIAS = 42
    vACC = 72
    vBF = 128
    vP = 176
    aA = 0

    A.l.append(".globl %s" % K2)
    A.l.append(".p2align 8")
    A.l.append(".type %s,@function" % K2)
    A.label(K2)
    A.e("s_cmp_ge_u32 s2, 256")
    A.e("s_cbranch_scc1 .Lk2_end")
    A.e("s_load_dwordx2 s[4:5], s[0:1], 56")
    A.e("s_load_dwordx2 s[8:9], s[0:1], 24")
    A.e("s_load_dwordx2 s[12:13], s[0:1], 32")
    A.e("s_load_dwordx2 s[16:17], s[0:1], 40")
    A.e("s_and_b32 %s, s2, 7" % s(sXCD))
    A.e("s_lshr_b32 %s, s2, 3" % s(sQ))
    A.e("s_lshr_b32 %s, %s, 1" % (s(sMT), s(sXCD)))
    A.e("s_lshl_b32 %s, %s, 3" % (s(sMT), s(sMT)))
    A.e("s_lshr_b32 %s, %s, 2" % (s(sT0), s(sQ)))
    A.e("s_add_u32 %s, %s, %s" % (s(sMT), s(sMT), s(sT0)))
    A.e("s_and_b32 %s, %s, 1" % (s(sNT), s(sXCD)))
    A.e("s_lshl_b32 %s, %s, 2" % (s(sNT), s(sNT)))
    A.e("s_and_b32 %s, %s, 3" % (s(sT0), s(sQ)))
    A.e("s_add_u32 %s, %s, %s" % (s(sNT), s(sNT), s(sT0)))
    A.e("s_mul_i32 %s, %s, %d" % (s(sN0B), s(sNT), ROWB))
    A.e("v_lshrrev_b32 %s, 6, v0" % v(vT))
    A.e("v_and_b32 %s, 63, v0" % v(vLANE))
    A.e("s_nop 0")
    A.e("v_readfirstlane_b32 %s, %s" % (s(sWAVE), v(vT)))
    A.e("v_and_b32 %s, 15, %s" % (v(vI), v(vLANE)))
    A.e("v_lshrrev_b32 %s, 4, %s" % (v(vG), v(vLANE)))
    A.e("s_waitcnt lgkmcnt(0)")
    srd(A, S_H, 56, M * F * 2)
    srd(A, S_W, 24, F * D * 2)
    srd(A, S_B, 32, D * 2)
    srd(A, S_O, 40, M * D * 2)
    A.e("s_lshr_b32 %s, %s, 1" % (s(sKP), s(sWAVE)))
    A.e("s_and_b32 %s, %s, 1" % (s(sT0), s(sWAVE)))
    A.e("s_lshl_b32 %s, %s, 5" % (s(sT0), s(sT0)))
    A.e("s_lshl_b32 %s, %s, 6" % (s(sROW), s(sMT)))
    A.e("s_add_u32 %s, %s, %s" % (s(sROW), s(sROW), s(sT0)))
    A.e("v_lshlrev_b32 %s, 3, %s" % (v(vBI), v(vG)))
    A.e("v_add_u32 %s, %s, %s" % (v(vBI), s(sN0B), v(vBI)))
    for nb in range(NU):
        A.vmem("buffer_load_dwordx2 %s, %s, %s, 0 offen offset:%d" %
               (v(vBIASRAW + 2 * nb, 2), v(vBI), s(S_B, 4), nb * 32), "bias")
    for e in range(DMA_PER_WAVE):
        A.e("s_mul_i32 %s, %s, %d" % (s(sT0), s(sWAVE), 64 * DMA_PER_WAVE))
        A.e("s_add_u32 %s, %s, %d" % (s(sT0), s(sT0), 64 * e))
        A.e("v_add_u32 %s, %s, %s" % (v(vT), s(sT0), v(vLANE)))
        magic = (65536 + PPR - 1) // PPR
        A.e("v_mul_u32_u24 %s, %d, %s" % (v(vT + 1), magic, v(vT)))
        A.e("v_lshrrev_b32 %s, 16, %s" % (v(vT + 1), v(vT + 1)))
        A.e("v_mul_u32_u24 %s, %d, %s" % (v(vT + 2), PPR, v(vT + 1)))
        A.e("v_sub_u32 %s, %s, %s" % (v(vT + 2), v(vT), v(vT + 2)))
        swap23(A, vT + 3, vT + 1, vT + 4, vT + 5)
        A.e("v_mul_u32_u24 %s, %d, %s" % (v(vDMA + e), D * 2, v(vT + 3)))
        A.e("v_lshl_add_u32 %s, %s, 4, %s" % (v(vDMA + e), v(vT + 2), v(vDMA + e)))
        A.e("v_add_u32 %s, %s, %s" % (v(vDMA + e), s(sN0B), v(vDMA + e)))
    A.e("v_add_u32 %s, %s, %s" % (v(vA0), s(sROW), v(vI)))
    A.e("v_mul_u32_u24 %s, %d, %s" % (v(vA0), F * 2, v(vA0)))
    A.e("v_lshl_add_u32 %s, %s, 4, %s" % (v(vA0), v(vG), v(vA0)))
    A.e("s_lshl_b32 %s, %s, 6" % (s(sT0), s(sKP)))
    A.e("v_add_u32 %s, %s, %s" % (v(vA0), s(sT0), v(vA0)))
    A.e("v_add_u32 %s, %d, %s" % (v(vA1), 16 * F * 2, v(vA0)))
    A.e("s_mul_i32 %s, %s, %d" % (s(sM0B), s(sWAVE), DMA_PER_WAVE * 1024))

    def issue_chunk(t):
        A.c("---- issue loads chunk %d" % t)
        A.e("s_mov_b32 %s, %d" % (s(sCH), t * CH_ROWS * D * 2))
        for e in range(DMA_PER_WAVE):
            A.e("s_add_u32 m0, %s, %d" % (s(sM0B), (t % RING) * CH_BYTES + e * 1024))
            A.e("s_nop 0")
            A.vmem("buffer_load_dwordx4 %s, %s, %s offen lds" % (v(vDMA + e), s(S_W, 4), s(sCH)), ("c", t))
        for half in range(2):
            ks = t * CH_KS + 2 * half
            if ks >= KS:
                continue
            u = 2 * t + half
            for f in range(2):
                A.vmem("buffer_load_dwordx4 %s, %s, %s, 0 offen offset:%d" %
                       (a(aA + (u * 2 + f) * 4, 4), v(vA0 + f), s(S_H, 4), ks * 64), ("c", t))

    for t in range(min(PRE, NCH)):
        issue_chunk(t)

    A.e("v_lshrrev_b32 %s, 1, %s" % (v(vT), v(vG)))
    A.e("v_lshlrev_b32 %s, 4, %s" % (v(vT), v(vT)))
    A.e("v_and_b32 %s, 1, %s" % (v(vT + 1), v(vG)))
    A.e("v_lshl_add_u32 %s, %s, 2, %s" % (v(vT), v(vT + 1), v(vT)))
    A.e("v_lshrrev_b32 %s, 2, %s" % (v(vT + 1), v(vI)))
    A.e("v_add_u32 %s, %s, %s" % (v(vT), v(vT), v(vT + 1)))
    A.e("s_lshl_b32 %s, %s, 5" % (s(sT0), s(sKP)))
    A.e("v_add_u32 %s, %s, %s" % (v(vT), s(sT0), v(vT)))
    A.e("v_mul_u32_u24 %s, %d, %s" % (v(vT), ROWB, v(vT)))
    A.e("v_and_b32 %s, 3, %s" % (v(vT + 1), v(vI)))
    A.e("v_lshl_add_u32 %s, %s, 3, %s" % (v(vBR), v(vT + 1), v(vT)))
    A.e("v_add_u32 %s, %d, %s" % (v(vBR + 1), 3 * CH_BYTES, v(vBR)))
    A.e("v_add_u32 %s, %d, %s" % (v(vBR + 2), 6 * CH_BYTES, v(vBR)))
    A.e("v_add_u32 %s, %s, %s" % (v(vO0), s(sROW), v(vI)))
    A.e("v_mul_u32_u24 %s, %d, %s" % (v(vO0), D * 2, v(vO0)))
    A.e("v_add_u32 %s, %s, %s" % (v(vO0), v(vBI), v(vO0)))
    A.e("v_add_u32 %s, %d, %s" % (v(vO1), 16 * D * 2, v(vO0)))
    A.e("s_and_b32 %s, %s, 1" % (s(sT0), s(sWAVE)))
    A.e("s_mul_i32 %s, %s, 10240" % (s(sT0), s(sT0)))
    A.e("s_add_u32 %s, %s, %d" % (s(sT0), s(sT0), RED_BASE))
    A.e("v_lshlrev_b32 %s, 4, %s" % (v(vRED), v(vLANE)))
    A.e("v_add_u32 %s, %s, %s" % (v(vRED), s(sT0), v(vRED)))
    A.wait_vm({"bias"})
    for nb in range(NU):
        for hlf in range(2):
            src = vBIASRAW + 2 * nb + hlf
            A.e("v_lshlrev_b32 %s, 16, %s" % (v(vBIAS + 4 * nb + 2 * hlf), v(src)))
            A.e("v_and_b32 %s, 0xffff0000, %s" % (v(vBIAS + 4 * nb + 2 * hlf + 1), v(src)))
    A.e("s_cmp_eq_u32 %s, 0" % s(sKP))
    A.e("s_cbranch_scc1 .Lk2_bias_ok")
    for r in range(4 * NU):
        A.e("v_mov_b32 %s, 0" % v(vBIAS + r))
    A.label(".Lk2_bias_ok")

    def issue_tr(u, nb, p):
        t = u // 2
        half = u % 2
        slot = t % RING
        base = vBR + slot // 3
        off = (slot % 3) * CH_BYTES + half * 2 * 32 * ROWB + p * 8 * ROWB + nb * 32
        assert off < 65536
        dst = vBF + (u & 1) * 20 + nb * 4 + 2 * p
        A.lds("ds_read_b64_tr_b16 %s, %s offset:%d" % (v(dst, 2), v(base), off), ("b", u))

    A.wait_vm({("c", 0)})
    A.e("s_barrier")
    if PRE < NCH:
        issue_chunk(PRE)
    for nb in range(NU):
        for p in range(2):
            issue_tr(0, nb, p)
    A.wait_lg()

    for u in range(NWK):
        A.c("==== wave k-step %d" % u)
        nxt = u + 1
        if nxt < NWK and nxt % 2 == 0:
            t = nxt // 2
            A.wait_vm({("c", t)})
            A.e("s_barrier")
            if t + PRE < NCH:
                issue_chunk(t + PRE)
        reads = [(nb, p) for nb in range(NU) for p in range(2)] if nxt < NWK else []
        mf = [(nb, f) for nb in range(NU) for f in range(2)]
        for idx, (nb, f) in enumerate(mf):
            acc = vACC + (f * NU + nb) * 4
            cop = v(vBIAS + 4 * nb, 4) if u == 0 else v(acc, 4)
            A.e("v_mfma_f32_16x16x32_bf16 %s, %s, %s, %s" %
                (v(acc, 4), v(vBF + (u & 1) * 20 + nb * 4, 4), a(aA + (u * 2 + f) * 4, 4), cop))
            if idx < len(reads):
                issue_tr(nxt, reads[idx][0], reads[idx][1])
        A.wait_lg()

    A.c("==== reduction")
    A.e("s_nop 7")
    A.e("s_nop 7")
    A.e("s_cmp_eq_u32 %s, 0" % s(sKP))
    A.e("s_cbranch_scc1 .Lk2_kp0")
    for fr in range(2 * NU):
        A.e("ds_write_b128 %s, %s offset:%d" % (v(vRED), v(vACC + fr * 4, 4), fr * 1024))
    A.e("s_waitcnt lgkmcnt(0)")
    A.e("s_barrier")
    A.e("s_branch .Lk2_end")
    A.label(".Lk2_kp0")
    A.e("s_barrier")
    for fr in range(2 * NU):
        A.e("ds_read_b128 %s, %s offset:%d" % (v(vP + fr * 4, 4), v(vRED), fr * 1024))
    for f in range(2):
        for nb in range(NU):
            fr = f * NU + nb
            acc = vACC + fr * 4
            A.e("s_waitcnt lgkmcnt(%d)" % (2 * NU - 1 - fr))
            A.e("v_pk_add_f32 %s, %s, %s" % (v(acc, 2), v(acc, 2), v(vP + fr * 4, 2)))
            A.e("v_pk_add_f32 %s, %s, %s" % (v(acc + 2, 2), v(acc + 2, 2), v(vP + fr * 4 + 2, 2)))
            A.e("v_cvt_pk_bf16_f32 %s, %s, %s" % (v(acc), v(acc), v(acc + 1)))
            A.e("v_cvt_pk_bf16_f32 %s, %s, %s" % (v(acc + 1), v(acc + 2), v(acc + 3)))
            A.e("buffer_store_dwordx2 %s, %s, %s, 0 offen offset:%d" %
                (v(acc, 2), v(vO0 + f), s(S_O, 4), nb * 32))
    A.e("s_waitcnt vmcnt(0)")
    A.label(".Lk2_end")
    A.e("s_endpgm")
    A.vm = []
    A.lg = []


def kd(name, nvgpr, accum):
    return """.amdhsa_kernel %s
  .amdhsa_next_free_vgpr %d
  .amdhsa_next_free_sgpr 102
  .amdhsa_accum_offset %d
  .amdhsa_group_segment_fixed_size 0
  .amdhsa_kernarg_size 64
  .amdhsa_user_sgpr_count 2
  .amdhsa_user_sgpr_kernarg_segment_ptr 1
  .amdhsa_system_sgpr_workgroup_id_x 1
.end_amdhsa_kernel
""" % (name, nvgpr, accum)


HEADER = """; Kernarg layout for this problem (64 bytes, ptrs only, base s[0:1]):
"""


def main():
    A = Asm()
    import os
    if os.environ.get("INSTR"):
        A.instr = True
        A.instr_wg = int(os.environ["INSTR"])
    gen_k1(A)
    gen_k2(A)
    out = HEADER
    out += "; @launch kernel=%s grid=(256,1,1) block=(256,1,1) lds=%d\n" % (K1, A.lds_bytes_k1)
    out += "; @launch kernel=%s grid=(256,1,1) block=(256,1,1) lds=%d\n" % (K2, A.lds_bytes_k2)
    out += '.amdgcn_target "amdgcn-amd-amdhsa--gfx950"\n.text\n'
    out += A.text()
    out += '.section .rodata,"a"\n.p2align 6\n'
    out += kd(K1, 512, 256)
    out += ".p2align 6\n"
    out += kd(K2, 512, 256)
    path = sys.argv[1] if len(sys.argv) > 1 else OUT
    open(path, "w").write(out)
    print("wrote", path, len(out), "bytes")


if __name__ == "__main__":
    main()
```

```python
import os
import sys

from gen import Asm, v, a, s, kd, srd, swap23, HEADER

M, D, F = 2048, 640, 1728
OUT = "standalone__dense_activation_squared_relu__prompt.s"
K1 = "standalone__dense_activation_squared_relu__prompt_kernel"
K2 = "mlp_gemm2_kernel"

H_BYTES = M * F * 2
W2T_OFF = 8 << 20
W2T_BYTES = F * D * 2
WS_BYTES = W2T_OFF + W2T_BYTES
KB_PER_ROWBLK = F // 32


def gen_k1(A):
    RING = 4
    CH_BYTES = 32768
    NCH = D // 64
    LDS_BYTES = RING * CH_BYTES
    A.lds_bytes_k1 = LDS_BYTES

    S_X, S_W, S_B, S_WS, S_W2 = 4, 8, 12, 16, 20
    sXCD, sQ, sMB, sNT, sWAVE, sT0, sT1, sN0B, sM0 = 24, 25, 26, 27, 28, 29, 30, 31, 32
    sAbase, sBbase, sLA, sLB, sSO = 33, 34, 35, 36, 37
    sH = 40
    vLANE, vI, vG, vT = 1, 2, 3, 4

    A.l.append(".globl %s" % K1)
    A.l.append(".p2align 8")
    A.l.append(".type %s,@function" % K1)
    A.label(K1)
    A.e("s_cmp_ge_u32 s2, 256")
    A.e("s_cbranch_scc1 .Lk1_end")
    A.stamp(0)
    A.e("s_load_dwordx2 s[4:5], s[0:1], 0")
    A.e("s_load_dwordx2 s[8:9], s[0:1], 8")
    A.e("s_load_dwordx2 s[12:13], s[0:1], 16")
    A.e("s_load_dwordx2 s[16:17], s[0:1], 56")
    A.e("s_load_dwordx2 s[20:21], s[0:1], 24")
    A.e("s_and_b32 %s, s2, 7" % s(sXCD))
    A.e("s_lshr_b32 %s, s2, 3" % s(sQ))
    A.e("v_lshrrev_b32 %s, 6, v0" % v(vT))
    A.e("v_and_b32 %s, 63, v0" % v(vLANE))
    A.e("s_nop 0")
    A.e("v_readfirstlane_b32 %s, %s" % (s(sWAVE), v(vT)))
    A.e("v_and_b32 %s, 15, %s" % (v(vI), v(vLANE)))
    A.e("v_lshrrev_b32 %s, 4, %s" % (v(vG), v(vLANE)))
    A.e("s_mul_i32 %s, %s, 37" % (s(sT0), s(sQ)))
    A.e("s_lshr_b32 %s, %s, 8" % (s(sT0), s(sT0)))
    A.e("s_mul_i32 %s, %s, 7" % (s(sT1), s(sT0)))
    A.e("s_sub_u32 %s, %s, %s" % (s(sT1), s(sQ), s(sT1)))
    A.e("s_lshr_b32 %s, %s, 1" % (s(sMB), s(sXCD)))
    A.e("s_lshl_b32 %s, %s, 2" % (s(sMB), s(sMB)))
    A.e("s_add_u32 %s, %s, %s" % (s(sMB), s(sMB), s(sT0)))
    A.e("s_and_b32 %s, %s, 1" % (s(sNT), s(sXCD)))
    A.e("s_mul_i32 %s, %s, 7" % (s(sNT), s(sNT)))
    A.e("s_add_u32 %s, %s, %s" % (s(sNT), s(sNT), s(sT1)))
    A.e("s_lshl_b32 %s, %s, 8" % (s(sN0B), s(sNT)))
    A.e("s_cmp_eq_u32 %s, 13" % s(sNT))
    A.e("s_cselect_b32 %s, 3200, %s" % (s(sN0B), s(sN0B)))
    A.e("s_waitcnt lgkmcnt(0)")
    srd(A, S_X, 0, M * D * 2)
    srd(A, S_W, 8, D * F * 2)
    srd(A, S_B, 16, F * 2)
    srd(A, S_WS, 56, WS_BYTES)
    srd(A, S_W2, 24, F * D * 2)
    A.e("s_cmp_ge_u32 %s, 28" % s(sQ))
    A.e("s_cbranch_scc1 .Lk1_retile")
    A.e("s_cmp_ge_u32 %s, 4" % s(sWAVE))
    A.e("s_cbranch_scc1 .Lk1_producer")

    A.c("======== consumer")
    vAr = 12
    vBr = 16
    vHB, vBI = 24, 25
    vBIASRAW = 26
    vBIAS = 36
    vACC = 64
    vAF = 128
    vBF = 160
    sWM, sWN = 44, 45
    A.e("s_lshr_b32 %s, %s, 1" % (s(sWM), s(sWAVE)))
    A.e("s_and_b32 %s, %s, 1" % (s(sWN), s(sWAVE)))
    A.e("s_lshl_b32 %s, %s, 7" % (s(sT0), s(sWN)))
    A.e("s_add_u32 %s, %s, %s" % (s(sT0), s(sT0), s(sN0B)))
    A.e("v_lshlrev_b32 %s, 3, %s" % (v(vBI), v(vG)))
    A.e("v_add_u32 %s, %s, %s" % (v(vBI), s(sT0), v(vBI)))
    for nb in range(4):
        A.vmem("buffer_load_dwordx2 %s, %s, %s, 0 offen offset:%d" %
               (v(vBIASRAW + 2 * nb, 2), v(vBI), s(S_B, 4), nb * 32), "bias")
    A.e("s_lshl_b32 %s, %s, 6" % (s(sT0), s(sWM)))
    A.e("v_add_u32 %s, %s, %s" % (v(vT), s(sT0), v(vI)))
    A.e("v_lshlrev_b32 %s, 7, %s" % (v(vT), v(vT)))
    A.e("v_and_b32 %s, 7, %s" % (v(vT + 1), v(vI)))
    for kk in range(2):
        A.e("v_add_u32 %s, %d, %s" % (v(vT + 2), 4 * kk, v(vG)))
        A.e("v_xor_b32 %s, %s, %s" % (v(vT + 2), v(vT + 2), v(vT + 1)))
        A.e("v_lshl_add_u32 %s, %s, 4, %s" % (v(vAr + 2 * kk), v(vT + 2), v(vT)))
        A.e("v_add_u32 %s, 0x10000, %s" % (v(vAr + 2 * kk + 1), v(vAr + 2 * kk)))
    A.e("v_and_b32 %s, 1, %s" % (v(vT), v(vG)))
    A.e("v_lshlrev_b32 %s, 2, %s" % (v(vT), v(vT)))
    A.e("v_lshrrev_b32 %s, 2, %s" % (v(vT + 1), v(vI)))
    A.e("v_add_u32 %s, %s, %s" % (v(vT), v(vT), v(vT + 1)))
    A.e("v_lshrrev_b32 %s, 1, %s" % (v(vT + 1), v(vG)))
    A.e("v_lshl_add_u32 %s, %s, 4, %s" % (v(vT + 1), v(vT + 1), v(vT)))
    A.e("v_lshlrev_b32 %s, 8, %s" % (v(vT + 1), v(vT + 1)))
    A.e("v_and_b32 %s, 3, %s" % (v(vT + 2), v(vI)))
    A.e("v_lshl_add_u32 %s, %s, 3, %s" % (v(vT + 1), v(vT + 2), v(vT + 1)))
    A.e("s_lshl_b32 %s, %s, 2" % (s(sT0), s(sWN)))
    for nb in range(4):
        A.e("v_mov_b32 %s, %d" % (v(vT + 2), nb))
        A.e("v_add_u32 %s, %s, %s" % (v(vT + 2), s(sT0), v(vT + 2)))
        A.e("v_xor_b32 %s, %s, %s" % (v(vT + 2), v(vT + 2), v(vT)))
        A.e("v_lshl_add_u32 %s, %s, 5, %s" % (v(vBr + 2 * nb), v(vT + 2), v(vT + 1)))
        A.e("v_add_u32 %s, 0x10000, %s" % (v(vBr + 2 * nb + 1), v(vBr + 2 * nb)))
    A.e("v_lshlrev_b32 %s, 6, %s" % (v(vHB), v(vI)))
    A.e("v_lshl_add_u32 %s, %s, 3, %s" % (v(vHB), v(vG), v(vHB)))
    A.e("s_lshl_b32 %s, %s, 3" % (s(sT0), s(sMB)))
    A.e("s_lshl_b32 %s, %s, 2" % (s(sT1), s(sWM)))
    A.e("s_add_u32 %s, %s, %s" % (s(sT0), s(sT0), s(sT1)))
    A.e("s_mul_i32 %s, %s, %d" % (s(sT0), s(sT0), KB_PER_ROWBLK))
    A.e("s_lshr_b32 %s, %s, 6" % (s(sT1), s(sN0B)))
    A.e("s_add_u32 %s, %s, %s" % (s(sT0), s(sT0), s(sT1)))
    A.e("s_lshl_b32 %s, %s, 1" % (s(sT1), s(sWN)))
    A.e("s_add_u32 %s, %s, %s" % (s(sT0), s(sT0), s(sT1)))
    A.e("s_lshl_b32 %s, %s, 10" % (s(sH), s(sT0)))
    for f in range(1, 4):
        A.e("s_add_u32 %s, %s, %d" % (s(sH + f), s(sH), f * KB_PER_ROWBLK * 1024))
    A.wait_vm({"bias"})
    for nb in range(4):
        for hlf in range(2):
            src = vBIASRAW + 2 * nb + hlf
            A.e("v_lshlrev_b32 %s, 16, %s" % (v(vBIAS + 4 * nb + 2 * hlf), v(src)))
            A.e("v_and_b32 %s, 0xffff0000, %s" % (v(vBIAS + 4 * nb + 2 * hlf + 1), v(src)))

    def rd_ops(t, kk):
        slot = t % RING
        hi = slot // 2
        sb = (slot % 2) * CH_BYTES
        buf = kk
        ops = []
        for f in range(4):
            ops.append("ds_read_b128 %s, %s offset:%d" %
                       (v(vAF + buf * 16 + f * 4, 4), v(vAr + 2 * kk + hi), sb + f * 2048))
        for nb in range(4):
            for p in range(2):
                ops.append("ds_read_b64_tr_b16 %s, %s offset:%d" %
                           (v(vBF + buf * 16 + nb * 4 + 2 * p, 2), v(vBr + 2 * nb + hi),
                            sb + 16384 + kk * 8192 + p * 2048))
        return ops

    def mfmas(t, kk, ops):
        buf = kk
        first = (t == 0 and kk == 0)
        idx = 0
        for nb in range(4):
            for f in range(4):
                acc = vACC + (f * 4 + nb) * 4
                cop = v(vBIAS + 4 * nb, 4) if first else v(acc, 4)
                A.e("v_mfma_f32_16x16x32_bf16 %s, %s, %s, %s" %
                    (v(acc, 4), v(vBF + buf * 16 + nb * 4, 4), v(vAF + buf * 16 + f * 4, 4), cop))
                if idx < len(ops):
                    A.lds(ops[idx], "f")
                idx += 1
        assert idx >= len(ops)

    A.e("s_barrier")
    A.stamp(1)
    for op in rd_ops(0, 0):
        A.lds(op, "f")
    A.wait_lg()
    for t in range(NCH):
        A.c("==== chunk %d" % t)
        mfmas(t, 0, rd_ops(t, 1))
        A.wait_lg()
        if t + 1 < NCH:
            A.e("s_barrier")
            A.stamp(2 + t)
            mfmas(t, 1, rd_ops(t + 1, 0))
        else:
            mfmas(t, 1, [])
        A.wait_lg()
    A.c("==== epilogue")
    A.stamp(11)
    A.e("s_nop 7")
    A.e("s_nop 7")
    A.e("s_cmp_eq_u32 %s, 13" % s(sNT))
    A.e("s_cbranch_scc0 .Lk1_store_all")
    A.e("s_cmp_eq_u32 %s, 0" % s(sWN))
    A.e("s_cbranch_scc1 .Lk1_end")
    A.label(".Lk1_store_all")
    for f in range(4):
        for nb in range(4):
            acc = vACC + (f * 4 + nb) * 4
            for r in range(4):
                A.e("v_max_f32 %s, 0, %s" % (v(acc + r), v(acc + r)))
            A.e("v_pk_mul_f32 %s, %s, %s" % (v(acc, 2), v(acc, 2), v(acc, 2)))
            A.e("v_pk_mul_f32 %s, %s, %s" % (v(acc + 2, 2), v(acc + 2, 2), v(acc + 2, 2)))
            A.e("v_cvt_pk_bf16_f32 %s, %s, %s" % (v(acc), v(acc), v(acc + 1)))
            A.e("v_cvt_pk_bf16_f32 %s, %s, %s" % (v(acc + 1), v(acc + 2), v(acc + 3)))
            A.e("buffer_store_dwordx2 %s, %s, %s, %s offen offset:%d" %
                (v(acc, 2), v(vHB), s(S_WS, 4), s(sH + f), (nb >> 1) * 1024 + (nb & 1) * 32))
    A.stamp(12)
    if A.instr:
        A.e("s_waitcnt vmcnt(0)")
    A.stamp(13)
    A.dump_stamps(16, 48, 4)
    A.e("s_branch .Lk1_end")
    A.vm = []
    A.lg = []

    A.label(".Lk1_producer")
    A.c("======== producer")
    vAoff, vBoff = 12, 13
    sPW = 44
    A.e("s_sub_u32 %s, %s, 4" % (s(sPW), s(sWAVE)))
    A.e("v_lshrrev_b32 %s, 3, %s" % (v(vT), v(vLANE)))
    A.e("v_and_b32 %s, 7, %s" % (v(vT + 1), v(vLANE)))
    A.e("v_xor_b32 %s, %s, %s" % (v(vT + 1), v(vT + 1), v(vT)))
    A.e("v_lshlrev_b32 %s, 4, %s" % (v(vT + 1), v(vT + 1)))
    A.e("v_mul_u32_u24 %s, %d, %s" % (v(vAoff), D * 2, v(vT)))
    A.e("v_add_u32 %s, %s, %s" % (v(vAoff), v(vAoff), v(vT + 1)))
    for par in range(2):
        A.e("v_add_u32 %s, %d, %s" % (v(vT), 4 * par, v(vG)))
        A.e("v_lshrrev_b32 %s, 1, %s" % (v(vT + 1), v(vI)))
        A.e("v_xor_b32 %s, %s, %s" % (v(vT + 1), v(vT + 1), v(vT)))
        A.e("v_lshlrev_b32 %s, 1, %s" % (v(vT + 1), v(vT + 1)))
        A.e("v_and_b32 %s, 1, %s" % (v(vT + 2), v(vI)))
        A.e("v_or_b32 %s, %s, %s" % (v(vT + 1), v(vT + 1), v(vT + 2)))
        A.e("v_lshlrev_b32 %s, 4, %s" % (v(vT + 1), v(vT + 1)))
        A.e("v_mul_u32_u24 %s, %d, %s" % (v(vBoff + par), F * 2, v(vG)))
        A.e("v_add_u32 %s, %s, %s" % (v(vBoff + par), v(vBoff + par), v(vT + 1)))
    A.e("s_mul_i32 %s, %s, %d" % (s(sAbase), s(sMB), 128 * D * 2))
    A.e("s_mul_i32 %s, %s, %d" % (s(sT0), s(sPW), 4 * 8 * D * 2))
    A.e("s_add_u32 %s, %s, %s" % (s(sAbase), s(sAbase), s(sT0)))
    A.e("s_lshl_b32 %s, %s, 12" % (s(sLA), s(sPW)))
    A.e("s_add_u32 %s, %s, 16384" % (s(sLB), s(sLA)))

    def sw01(e):
        return (e & ~3) | ((e & 1) << 1) | ((e >> 1) & 1)

    def p_issue(t):
        slot = t % RING
        A.c("---- issue chunk %d" % t)
        for aa in range(4):
            A.e("s_add_u32 m0, %s, %d" % (s(sLA), slot * CH_BYTES + aa * 1024))
            A.e("s_add_u32 %s, %s, %d" % (s(sSO), s(sAbase), aa * 8 * D * 2 + t * 128))
            A.vmem("buffer_load_dwordx4 %s, %s, %s offen lds" % (v(vAoff), s(S_X, 4), s(sSO)), ("c", t))
        for b in range(4):
            A.e("s_add_u32 m0, %s, %d" % (s(sLB), slot * CH_BYTES + b * 1024))
            A.e("s_add_u32 %s, %s, %d" % (s(sSO), s(sBbase), (64 * t + 4 * sw01(b)) * F * 2))
            A.vmem("buffer_load_dwordx4 %s, %s, %s offen lds" % (v(vBoff + (b & 1)), s(S_W, 4), s(sSO)), ("c", t))

    A.e("s_mul_i32 %s, %s, %d" % (s(sBbase), s(sPW), 16 * F * 2))
    A.e("s_add_u32 %s, %s, %s" % (s(sBbase), s(sBbase), s(sN0B)))
    p_issue(0)
    p_issue(1)
    for t in range(NCH):
        A.wait_vm({("c", t)})
        A.e("s_barrier")
        if t == 0:
            p_issue(2)
            p_issue(3)
        elif t + RING - 1 < NCH:
            p_issue(t + RING - 1)
    A.e("s_branch .Lk1_end")
    A.vm = []

    A.label(".Lk1_retile")
    A.c("======== w2 re-tile: job r = (q-28)*8 + xcd ; k-steps r, r+32")
    sR, sKS = 44, 45
    vD = 12
    vR = 20
    vSt = 26
    vFr = 32
    A.e("s_sub_u32 %s, %s, 28" % (s(sR), s(sQ)))
    A.e("s_lshl_b32 %s, %s, 3" % (s(sR), s(sR)))
    A.e("s_add_u32 %s, %s, %s" % (s(sR), s(sR), s(sXCD)))
    for e in range(5):
        A.e("s_mul_i32 %s, %s, 320" % (s(sT0), s(sWAVE)))
        A.e("s_add_u32 %s, %s, %d" % (s(sT0), s(sT0), 64 * e))
        A.e("v_add_u32 %s, %s, %s" % (v(vT), s(sT0), v(vLANE)))
        magic = ((1 << 20) + 79) // 80
        A.e("v_mul_u32_u24 %s, %d, %s" % (v(vT + 1), magic, v(vT)))
        A.e("v_lshrrev_b32 %s, 20, %s" % (v(vT + 1), v(vT + 1)))
        A.e("v_mul_u32_u24 %s, 80, %s" % (v(vT + 2), v(vT + 1)))
        A.e("v_sub_u32 %s, %s, %s" % (v(vT + 2), v(vT), v(vT + 2)))
        A.e("v_lshrrev_b32 %s, 1, %s" % (v(vT + 3), v(vT + 2)))
        A.e("v_xor_b32 %s, %s, %s" % (v(vT + 4), v(vT + 3), v(vT + 1)))
        A.e("v_and_b32 %s, 7, %s" % (v(vT + 4), v(vT + 4)))
        A.e("v_and_b32 %s, 0xfffffff8, %s" % (v(vT + 3), v(vT + 3)))
        A.e("v_or_b32 %s, %s, %s" % (v(vT + 3), v(vT + 3), v(vT + 4)))
        A.e("v_and_b32 %s, 1, %s" % (v(vT + 2), v(vT + 2)))
        A.e("v_lshl_add_u32 %s, %s, 1, %s" % (v(vT + 3), v(vT + 3), v(vT + 2)))
        swap23(A, vT + 2, vT + 1, vT + 4, vT + 5)
        A.e("v_mul_u32_u24 %s, %d, %s" % (v(vD + e), D * 2, v(vT + 2)))
        A.e("v_lshl_add_u32 %s, %s, 4, %s" % (v(vD + e), v(vT + 3), v(vD + e)))
    A.e("v_and_b32 %s, 1, %s" % (v(vT), v(vG)))
    A.e("v_lshlrev_b32 %s, 2, %s" % (v(vT), v(vT)))
    A.e("v_lshrrev_b32 %s, 2, %s" % (v(vT + 1), v(vI)))
    A.e("v_add_u32 %s, %s, %s" % (v(vT), v(vT), v(vT + 1)))
    A.e("v_lshrrev_b32 %s, 1, %s" % (v(vT + 1), v(vG)))
    A.e("v_lshl_add_u32 %s, %s, 4, %s" % (v(vT + 1), v(vT + 1), v(vT)))
    A.e("v_mul_u32_u24 %s, %d, %s" % (v(vT + 1), D * 2, v(vT + 1)))
    A.e("v_and_b32 %s, 3, %s" % (v(vT + 2), v(vI)))
    A.e("v_lshl_add_u32 %s, %s, 3, %s" % (v(vT + 1), v(vT + 2), v(vT + 1)))
    A.e("s_mul_i32 %s, %s, 5" % (s(sT1), s(sWAVE)))
    for j in range(5):
        A.e("v_mov_b32 %s, %d" % (v(vT + 2), j))
        A.e("v_add_u32 %s, %s, %s" % (v(vT + 2), s(sT1), v(vT + 2)))
        A.e("v_xor_b32 %s, %s, %s" % (v(vT + 3), v(vT + 2), v(vT)))
        A.e("v_and_b32 %s, 7, %s" % (v(vT + 3), v(vT + 3)))
        A.e("v_and_b32 %s, 0xfffffff8, %s" % (v(vT + 2), v(vT + 2)))
        A.e("v_or_b32 %s, %s, %s" % (v(vT + 2), v(vT + 2), v(vT + 3)))
        A.e("v_lshl_add_u32 %s, %s, 5, %s" % (v(vR + j), v(vT + 2), v(vT + 1)))
    A.e("v_lshlrev_b32 %s, 4, %s" % (v(vSt), v(vLANE)))
    A.e("s_mul_i32 %s, %s, 5120" % (s(sLA), s(sWAVE)))
    A.e("s_mov_b32 %s, %s" % (s(sKS), s(sR)))
    A.label(".Lk1_rt_loop")
    A.e("s_mul_i32 %s, %s, %d" % (s(sSO), s(sKS), 32 * D * 2))
    for e in range(5):
        A.e("s_add_u32 m0, %s, %d" % (s(sLA), e * 1024))
        A.e("s_nop 0")
        A.e("buffer_load_dwordx4 %s, %s, %s offen lds" % (v(vD + e), s(S_W2, 4), s(sSO)))
    A.e("s_waitcnt vmcnt(0)")
    A.e("s_barrier")
    for j in range(5):
        for p in range(2):
            A.e("ds_read_b64_tr_b16 %s, %s offset:%d" % (v(vFr + 4 * j + 2 * p, 2), v(vR + j), p * 8 * D * 2))
    A.e("s_waitcnt lgkmcnt(0)")
    A.e("s_barrier")
    A.e("s_mul_i32 %s, %s, 40" % (s(sT0), s(sKS)))
    A.e("s_add_u32 %s, %s, %s" % (s(sT0), s(sT0), s(sT1)))
    A.e("s_lshl_b32 %s, %s, 10" % (s(sT0), s(sT0)))
    A.e("s_add_u32 %s, %s, %d" % (s(sT0), s(sT0), W2T_OFF))
    for j in range(5):
        if j == 4:
            A.e("s_add_u32 %s, %s, 4096" % (s(sT0), s(sT0)))
        A.e("buffer_store_dwordx4 %s, %s, %s, %s offen offset:%d" %
            (v(vFr + 4 * j, 4), v(vSt), s(S_WS, 4), s(sT0), (j % 4) * 1024))
    A.e("s_add_u32 %s, %s, 32" % (s(sKS), s(sKS)))
    A.e("s_cmp_lt_u32 %s, %d" % (s(sKS), F // 32))
    A.e("s_cbranch_scc1 .Lk1_rt_loop")
    A.label(".Lk1_end")
    A.e("s_endpgm")
    A.vm = []
    A.lg = []


def gen_k2(A):
    KS = F // 32
    NCH = (KS + 3) // 4
    RING = 4
    KS_BYTES = 9 * 1024
    CH_BYTES = 4 * KS_BYTES
    LDS_BYTES = RING * CH_BYTES
    A.lds_bytes_k2 = LDS_BYTES
    S_WS, S_B, S_O = 4, 12, 16
    sXCD, sQ, sMT, sNT, sWAVE, sT0, sT1, sN0B = 24, 25, 26, 27, 28, 29, 30, 31
    sA, sB, sSO, sL = 32, 33, 34, 35
    vLANE, vI, vG, vT = 1, 2, 3, 4
    vLO, vLA = 12, 13

    A.l.append(".globl %s" % K2)
    A.l.append(".p2align 8")
    A.l.append(".type %s,@function" % K2)
    A.label(K2)
    A.e("s_cmp_ge_u32 s2, 256")
    A.e("s_cbranch_scc1 .Lk2_end")
    A.stamp(0)
    A.e("s_load_dwordx2 s[4:5], s[0:1], 56")
    A.e("s_load_dwordx2 s[12:13], s[0:1], 32")
    A.e("s_load_dwordx2 s[16:17], s[0:1], 40")
    A.e("s_and_b32 %s, s2, 7" % s(sXCD))
    A.e("s_lshr_b32 %s, s2, 3" % s(sQ))
    A.e("s_lshr_b32 %s, %s, 1" % (s(sMT), s(sXCD)))
    A.e("s_lshl_b32 %s, %s, 3" % (s(sMT), s(sMT)))
    A.e("s_lshr_b32 %s, %s, 2" % (s(sT0), s(sQ)))
    A.e("s_add_u32 %s, %s, %s" % (s(sMT), s(sMT), s(sT0)))
    A.e("s_and_b32 %s, %s, 1" % (s(sNT), s(sXCD)))
    A.e("s_lshl_b32 %s, %s, 2" % (s(sNT), s(sNT)))
    A.e("s_and_b32 %s, %s, 3" % (s(sT0), s(sQ)))
    A.e("s_add_u32 %s, %s, %s" % (s(sNT), s(sNT), s(sT0)))
    A.e("s_mul_i32 %s, %s, 160" % (s(sN0B), s(sNT)))
    A.e("v_lshrrev_b32 %s, 6, v0" % v(vT))
    A.e("v_and_b32 %s, 63, v0" % v(vLANE))
    A.e("s_nop 0")
    A.e("v_readfirstlane_b32 %s, %s" % (s(sWAVE), v(vT)))
    A.e("v_and_b32 %s, 15, %s" % (v(vI), v(vLANE)))
    A.e("v_lshrrev_b32 %s, 4, %s" % (v(vG), v(vLANE)))
    A.e("v_lshlrev_b32 %s, 4, %s" % (v(vLO), v(vLANE)))
    A.e("s_waitcnt lgkmcnt(0)")
    srd(A, S_WS, 56, WS_BYTES)
    srd(A, S_B, 32, D * 2)
    srd(A, S_O, 40, M * D * 2)
    A.e("s_and_b32 %s, %s, 3" % (s(sT1), s(sWAVE)))
    A.e("s_cmp_ge_u32 %s, 4" % s(sWAVE))
    A.e("s_cbranch_scc1 .Lk2_producer")

    A.c("======== consumer")
    vO, vBI = 14, 15
    vRA, vRB_ = 16, 18
    vBIASRAW = 20
    vBIAS = 30
    vACC = 52
    vFB = 132
    A.e("v_lshlrev_b32 %s, 3, %s" % (v(vBI), v(vG)))
    A.e("v_add_u32 %s, %s, %s" % (v(vBI), s(sN0B), v(vBI)))
    for nu in range(5):
        A.vmem("buffer_load_dwordx2 %s, %s, %s, 0 offen offset:%d" %
               (v(vBIASRAW + 2 * nu, 2), v(vBI), s(S_B, 4), nu * 32), "bias")
    A.e("s_mul_i32 %s, %s, %d" % (s(sT0), s(sT1), KS_BYTES))
    A.e("v_lshlrev_b32 %s, 6, %s" % (v(vRA), v(vI)))
    A.e("v_lshl_add_u32 %s, %s, 4, %s" % (v(vRA), v(vG), v(vRA)))
    A.e("v_add_u32 %s, %s, %s" % (v(vRA), s(sT0), v(vRA)))
    A.e("v_add_u32 %s, %d, %s" % (v(vRA + 1), 2 * CH_BYTES, v(vRA)))
    A.e("v_add_u32 %s, %s, %s" % (v(vRB_), s(sT0), v(vLO)))
    A.e("v_add_u32 %s, %d, %s" % (v(vRB_ + 1), 2 * CH_BYTES, v(vRB_)))
    A.e("s_lshl_b32 %s, %s, 6" % (s(sT0), s(sMT)))
    A.e("v_add_u32 %s, %s, %s" % (v(vO), s(sT0), v(vI)))
    A.e("v_mul_u32_u24 %s, %d, %s" % (v(vO), D * 2, v(vO)))
    A.e("v_add_u32 %s, %s, %s" % (v(vO), v(vBI), v(vO)))
    A.wait_vm({"bias"})
    for nu in range(5):
        for hlf in range(2):
            src = vBIASRAW + 2 * nu + hlf
            A.e("v_lshlrev_b32 %s, 16, %s" % (v(vBIAS + 4 * nu + 2 * hlf), v(src)))
            A.e("v_and_b32 %s, 0xffff0000, %s" % (v(vBIAS + 4 * nu + 2 * hlf + 1), v(src)))
    A.e("s_cmp_eq_u32 %s, 0" % s(sT1))
    A.e("s_cbranch_scc1 .Lk2_bias_ok")
    for r in range(20):
        A.e("v_mov_b32 %s, 0" % v(vBIAS + r))
    A.label(".Lk2_bias_ok")

    def rd_ops(c):
        slot = c % RING
        hi = slot // 2
        sb = (slot % 2) * CH_BYTES
        buf = c & 1
        ops = []
        for f in range(4):
            ops.append("ds_read_b128 %s, %s offset:%d" % (v(vFB + buf * 36 + f * 4, 4), v(vRA + hi), sb + f * 1024))
        for nu in range(5):
            ops.append("ds_read_b128 %s, %s offset:%d" % (v(vFB + buf * 36 + 16 + nu * 4, 4), v(vRB_ + hi), sb + 4096 + nu * 1024))
        return ops

    def mfmas(c, ops):
        buf = c & 1
        idx = 0
        for nu in range(5):
            for f in range(4):
                acc = vACC + (f * 5 + nu) * 4
                cop = v(vBIAS + 4 * nu, 4) if c == 0 else v(acc, 4)
                A.e("v_mfma_f32_16x16x32_bf16 %s, %s, %s, %s" %
                    (v(acc, 4), v(vFB + buf * 36 + 16 + nu * 4, 4), v(vFB + buf * 36 + f * 4, 4), cop))
                if idx < len(ops):
                    A.lds(ops[idx], "f")
                idx += 1

    A.e("s_barrier")
    A.stamp(1)
    for op in rd_ops(0):
        A.lds(op, "f")
    A.wait_lg()
    for c in range(NCH):
        A.c("==== chunk %d" % c)
        last_valid_only = (c + 1 == NCH - 1) and (KS % 4 != 0)
        if c + 1 < NCH:
            A.e("s_barrier")
            if last_valid_only:
                A.e("s_cmp_ge_u32 %s, %d" % (s(sT1), KS % 4))
                A.e("s_cbranch_scc1 .Lk2_tail_skip")
                lg_save = list(A.lg)
                mfmas(c, rd_ops(c + 1))
                A.wait_lg()
                mfmas(c + 1, [])
                A.e("s_branch .Lk2_loop_done")
                A.label(".Lk2_tail_skip")
                A.lg = lg_save
                mfmas(c, [])
                break
            mfmas(c, rd_ops(c + 1))
        else:
            mfmas(c, [])
        A.wait_lg()
    A.label(".Lk2_loop_done")
    A.lg = []
    A.stamp(2)
    A.c("==== reduction")
    A.e("s_nop 7")
    A.e("s_nop 7")
    A.e("s_barrier")
    A.e("s_mul_i32 %s, %s, 20480" % (s(sT0), s(sT1)))
    A.e("v_add_u32 %s, %s, %s" % (v(vT), s(sT0), v(vLO)))
    for fr in range(20):
        A.e("ds_write_b128 %s, %s offset:%d" % (v(vT), v(vACC + fr * 4, 4), fr * 1024))
    A.e("s_waitcnt lgkmcnt(0)")
    A.e("s_barrier")
    A.e("s_mul_i32 %s, %s, 5120" % (s(sT0), s(sT1)))
    A.e("v_add_u32 %s, %s, %s" % (v(vT + 1), s(sT0), v(vLO)))
    A.e("v_add_u32 %s, %d, %s" % (v(vT + 2), 40960, v(vT + 1)))
    vRB = vFB
    def red_reads(j):
        for src in range(4):
            A.e("ds_read_b128 %s, %s offset:%d" % (v(vRB + (j * 4 + src) * 4, 4), v(vT + 1 + src // 2), (src % 2) * 20480 + j * 1024))
    red_reads(0)
    A.e("s_mul_i32 %s, %s, %d" % (s(sSO), s(sT1), 16 * D * 2))
    for j in range(5):
        if j + 1 < 5:
            red_reads(j + 1)
        A.e("s_waitcnt lgkmcnt(%d)" % (4 if j + 1 < 5 else 0))
        r0 = vRB + j * 16
        A.e("v_pk_add_f32 %s, %s, %s" % (v(r0, 2), v(r0, 2), v(r0 + 4, 2)))
        A.e("v_pk_add_f32 %s, %s, %s" % (v(r0 + 2, 2), v(r0 + 2, 2), v(r0 + 6, 2)))
        A.e("v_pk_add_f32 %s, %s, %s" % (v(r0 + 8, 2), v(r0 + 8, 2), v(r0 + 12, 2)))
        A.e("v_pk_add_f32 %s, %s, %s" % (v(r0 + 10, 2), v(r0 + 10, 2), v(r0 + 14, 2)))
        A.e("v_pk_add_f32 %s, %s, %s" % (v(r0, 2), v(r0, 2), v(r0 + 8, 2)))
        A.e("v_pk_add_f32 %s, %s, %s" % (v(r0 + 2, 2), v(r0 + 2, 2), v(r0 + 10, 2)))
        A.e("v_cvt_pk_bf16_f32 %s, %s, %s" % (v(r0), v(r0), v(r0 + 1)))
        A.e("v_cvt_pk_bf16_f32 %s, %s, %s" % (v(r0 + 1), v(r0 + 2), v(r0 + 3)))
        A.e("buffer_store_dwordx2 %s, %s, %s, %s offen offset:%d" % (v(r0, 2), v(vO), s(S_O, 4), s(sSO), j * 32))
    A.stamp(3)
    A.e("s_waitcnt vmcnt(0)")
    A.stamp(4)
    A.dump_stamps(16, 48, 4)
    A.e("s_branch .Lk2_end")
    A.vm = []
    A.lg = []

    A.label(".Lk2_producer")
    A.c("======== producer: pw = sT1 ; loads k-step 4c+pw of chunk c")
    A.e("s_mul_i32 %s, %s, %d" % (s(sA), s(sMT), 4 * KB_PER_ROWBLK))
    A.e("s_add_u32 %s, %s, %s" % (s(sA), s(sA), s(sT1)))
    A.e("s_lshl_b32 %s, %s, 10" % (s(sA), s(sA)))
    A.e("s_mul_i32 %s, %s, 40" % (s(sB), s(sT1)))
    A.e("s_mul_i32 %s, %s, 5" % (s(sT0), s(sNT)))
    A.e("s_add_u32 %s, %s, %s" % (s(sB), s(sB), s(sT0)))
    A.e("s_lshl_b32 %s, %s, 10" % (s(sB), s(sB)))
    A.e("s_add_u32 %s, %s, %d" % (s(sB), s(sB), W2T_OFF))
    A.e("s_mul_i32 %s, %s, %d" % (s(sL), s(sT1), KS_BYTES))

    def p_issue(c):
        slot = c % RING
        partial = (4 * c + 3 >= KS)
        A.c("---- issue chunk %d" % c)
        if partial:
            A.e("s_cmp_ge_u32 %s, %d" % (s(sT1), KS - 4 * c))
            A.e("s_cbranch_scc1 .Lk2_pskip%d" % c)
        for f in range(4):
            A.e("s_add_u32 m0, %s, %d" % (s(sL), slot * CH_BYTES + f * 1024))
            A.e("s_add_u32 %s, %s, %d" % (s(sSO), s(sA), f * KB_PER_ROWBLK * 1024 + c * 4 * 1024))
            A.vmem("buffer_load_dwordx4 %s, %s, %s offen lds" % (v(vLO), s(S_WS, 4), s(sSO)), ("c", c))
        for nu in range(5):
            A.e("s_add_u32 m0, %s, %d" % (s(sL), slot * CH_BYTES + 4096 + nu * 1024))
            A.e("s_add_u32 %s, %s, %d" % (s(sSO), s(sB), c * 4 * 40 * 1024 + nu * 1024))
            A.vmem("buffer_load_dwordx4 %s, %s, %s offen lds" % (v(vLO), s(S_WS, 4), s(sSO)), ("c", c))
        if partial:
            A.label(".Lk2_pskip%d" % c)
            A.vm = [x for x in A.vm if x != ("c", c)]

    p_issue(0)
    p_issue(1)
    for c in range(NCH):
        if 4 * c + 3 >= KS:
            A.e("s_waitcnt vmcnt(0)")
            A.vm = []
        else:
            A.wait_vm({("c", c)})
        A.e("s_barrier")
        if c == 0:
            p_issue(2)
            p_issue(3)
        elif c + RING - 1 < NCH:
            p_issue(c + RING - 1)
    A.label(".Lk2_end")
    A.e("s_endpgm")
    A.vm = []
    A.lg = []


def main():
    A = Asm()
    if os.environ.get("INSTR"):
        A.instr = True
        A.instr_wg = int(os.environ["INSTR"])
    gen_k1(A)
    gen_k2(A)
    out = HEADER
    out += "; @launch kernel=%s grid=(256,1,1) block=(512,1,1) lds=%d\n" % (K1, A.lds_bytes_k1)
    out += "; @launch kernel=%s grid=(256,1,1) block=(512,1,1) lds=%d\n" % (K2, A.lds_bytes_k2)
    out += '.amdgcn_target "amdgcn-amd-amdhsa--gfx950"\n.text\n'
    out += A.text()
    out += '.section .rodata,"a"\n.p2align 6\n'
    out += kd(K1, 256, 256)
    out += ".p2align 6\n"
    out += kd(K2, 256, 256)
    path = sys.argv[1] if len(sys.argv) > 1 else OUT
    open(path, "w").write(out)
    print("wrote", path, len(out), "bytes")


if __name__ == "__main__":
    main()
```

```python
import os
import sys

from gen import Asm, v, a, s, kd, srd, swap23, HEADER

M, D, F = 2048, 640, 1728
OUT = "standalone__dense_activation_squared_relu__prompt.s"
K1 = "standalone__dense_activation_squared_relu__prompt_kernel"
K2 = "mlp_gemm2_kernel"

H_BYTES = M * F * 2
W2T_OFF = 8 << 20
W2T_BYTES = F * D * 2
WS_BYTES = W2T_OFF + W2T_BYTES
KB_PER_ROWBLK = F // 32


def gen_k1(A):
    RING = 4
    CH_BYTES = 32768
    NCH = D // 64
    LDS_BYTES = RING * CH_BYTES
    A.lds_bytes_k1 = LDS_BYTES

    S_X, S_W, S_B, S_WS, S_W2 = 4, 8, 12, 16, 20
    sXCD, sQ, sMB, sNT, sWAVE, sT0, sT1, sN0B, sM0 = 24, 25, 26, 27, 28, 29, 30, 31, 32
    sAbase, sBbase, sLA, sLB, sSO = 33, 34, 35, 36, 37
    sH = 40
    vLANE, vI, vG, vT = 1, 2, 3, 4

    A.l.append(".globl %s" % K1)
    A.l.append(".p2align 8")
    A.l.append(".type %s,@function" % K1)
    A.label(K1)
    A.e("s_cmp_ge_u32 s2, 256")
    A.e("s_cbranch_scc1 .Lk1_end")
    A.stamp(0)
    A.e("s_load_dwordx2 s[4:5], s[0:1], 0")
    A.e("s_load_dwordx2 s[8:9], s[0:1], 8")
    A.e("s_load_dwordx2 s[12:13], s[0:1], 16")
    A.e("s_load_dwordx2 s[16:17], s[0:1], 56")
    A.e("s_load_dwordx2 s[20:21], s[0:1], 24")
    A.e("s_and_b32 %s, s2, 7" % s(sXCD))
    A.e("s_lshr_b32 %s, s2, 3" % s(sQ))
    A.e("v_lshrrev_b32 %s, 6, v0" % v(vT))
    A.e("v_and_b32 %s, 63, v0" % v(vLANE))
    A.e("s_nop 0")
    A.e("v_readfirstlane_b32 %s, %s" % (s(sWAVE), v(vT)))
    A.e("v_and_b32 %s, 15, %s" % (v(vI), v(vLANE)))
    A.e("v_lshrrev_b32 %s, 4, %s" % (v(vG), v(vLANE)))
    A.e("s_mul_i32 %s, %s, 37" % (s(sT0), s(sQ)))
    A.e("s_lshr_b32 %s, %s, 8" % (s(sT0), s(sT0)))
    A.e("s_mul_i32 %s, %s, 7" % (s(sT1), s(sT0)))
    A.e("s_sub_u32 %s, %s, %s" % (s(sT1), s(sQ), s(sT1)))
    A.e("s_lshr_b32 %s, %s, 1" % (s(sMB), s(sXCD)))
    A.e("s_lshl_b32 %s, %s, 2" % (s(sMB), s(sMB)))
    A.e("s_add_u32 %s, %s, %s" % (s(sMB), s(sMB), s(sT0)))
    A.e("s_and_b32 %s, %s, 1" % (s(sNT), s(sXCD)))
    A.e("s_mul_i32 %s, %s, 7" % (s(sNT), s(sNT)))
    A.e("s_add_u32 %s, %s, %s" % (s(sNT), s(sNT), s(sT1)))
    A.e("s_lshl_b32 %s, %s, 8" % (s(sN0B), s(sNT)))
    A.e("s_cmp_eq_u32 %s, 13" % s(sNT))
    A.e("s_cselect_b32 %s, 3200, %s" % (s(sN0B), s(sN0B)))
    A.e("s_waitcnt lgkmcnt(0)")
    srd(A, S_X, 0, M * D * 2)
    srd(A, S_W, 8, D * F * 2)
    srd(A, S_B, 16, F * 2)
    srd(A, S_WS, 56, WS_BYTES)
    srd(A, S_W2, 24, F * D * 2)
    A.e("s_cmp_ge_u32 %s, 28" % s(sQ))
    A.e("s_cbranch_scc1 .Lk1_retile")
    A.e("s_cmp_ge_u32 %s, 4" % s(sWAVE))
    A.e("s_cbranch_scc1 .Lk1_producer")

    A.c("======== consumer")
    vAr = 12
    vBr = 16
    vHB, vBI = 24, 25
    vBIASRAW = 26
    vBIAS = 36
    vACC = 64
    vAF = 128
    vBF = 160
    sWM, sWN = 44, 45
    A.e("s_lshr_b32 %s, %s, 1" % (s(sWM), s(sWAVE)))
    A.e("s_and_b32 %s, %s, 1" % (s(sWN), s(sWAVE)))
    A.e("s_lshl_b32 %s, %s, 7" % (s(sT0), s(sWN)))
    A.e("s_add_u32 %s, %s, %s" % (s(sT0), s(sT0), s(sN0B)))
    A.e("v_lshlrev_b32 %s, 3, %s" % (v(vBI), v(vG)))
    A.e("v_add_u32 %s, %s, %s" % (v(vBI), s(sT0), v(vBI)))
    for nb in range(4):
        A.vmem("buffer_load_dwordx2 %s, %s, %s, 0 offen offset:%d" %
               (v(vBIASRAW + 2 * nb, 2), v(vBI), s(S_B, 4), nb * 32), "bias")
    A.e("s_lshl_b32 %s, %s, 6" % (s(sT0), s(sWM)))
    A.e("v_add_u32 %s, %s, %s" % (v(vT), s(sT0), v(vI)))
    A.e("v_lshlrev_b32 %s, 7, %s" % (v(vT), v(vT)))
    A.e("v_and_b32 %s, 7, %s" % (v(vT + 1), v(vI)))
    for kk in range(2):
        A.e("v_add_u32 %s, %d, %s" % (v(vT + 2), 4 * kk, v(vG)))
        A.e("v_xor_b32 %s, %s, %s" % (v(vT + 2), v(vT + 2), v(vT + 1)))
        A.e("v_lshl_add_u32 %s, %s, 4, %s" % (v(vAr + 2 * kk), v(vT + 2), v(vT)))
        A.e("v_add_u32 %s, 0x10000, %s" % (v(vAr + 2 * kk + 1), v(vAr + 2 * kk)))
    A.e("v_and_b32 %s, 1, %s" % (v(vT), v(vG)))
    A.e("v_lshlrev_b32 %s, 2, %s" % (v(vT), v(vT)))
    A.e("v_lshrrev_b32 %s, 2, %s" % (v(vT + 1), v(vI)))
    A.e("v_add_u32 %s, %s, %s" % (v(vT), v(vT), v(vT + 1)))
    A.e("v_lshrrev_b32 %s, 1, %s" % (v(vT + 1), v(vG)))
    A.e("v_lshl_add_u32 %s, %s, 4, %s" % (v(vT + 1), v(vT + 1), v(vT)))
    A.e("v_lshlrev_b32 %s, 8, %s" % (v(vT + 1), v(vT + 1)))
    A.e("v_and_b32 %s, 3, %s" % (v(vT + 2), v(vI)))
    A.e("v_lshl_add_u32 %s, %s, 3, %s" % (v(vT + 1), v(vT + 2), v(vT + 1)))
    A.e("s_lshl_b32 %s, %s, 2" % (s(sT0), s(sWN)))
    for nb in range(4):
        A.e("v_mov_b32 %s, %d" % (v(vT + 2), nb))
        A.e("v_add_u32 %s, %s, %s" % (v(vT + 2), s(sT0), v(vT + 2)))
        A.e("v_xor_b32 %s, %s, %s" % (v(vT + 2), v(vT + 2), v(vT)))
        A.e("v_lshl_add_u32 %s, %s, 5, %s" % (v(vBr + 2 * nb), v(vT + 2), v(vT + 1)))
        A.e("v_add_u32 %s, 0x10000, %s" % (v(vBr + 2 * nb + 1), v(vBr + 2 * nb)))
    A.e("v_lshlrev_b32 %s, 6, %s" % (v(vHB), v(vI)))
    A.e("v_lshl_add_u32 %s, %s, 3, %s" % (v(vHB), v(vG), v(vHB)))
    A.e("s_lshl_b32 %s, %s, 3" % (s(sT0), s(sMB)))
    A.e("s_lshl_b32 %s, %s, 2" % (s(sT1), s(sWM)))
    A.e("s_add_u32 %s, %s, %s" % (s(sT0), s(sT0), s(sT1)))
    A.e("s_mul_i32 %s, %s, %d" % (s(sT0), s(sT0), KB_PER_ROWBLK))
    A.e("s_lshr_b32 %s, %s, 6" % (s(sT1), s(sN0B)))
    A.e("s_add_u32 %s, %s, %s" % (s(sT0), s(sT0), s(sT1)))
    A.e("s_lshl_b32 %s, %s, 1" % (s(sT1), s(sWN)))
    A.e("s_add_u32 %s, %s, %s" % (s(sT0), s(sT0), s(sT1)))
    A.e("s_lshl_b32 %s, %s, 10" % (s(sH), s(sT0)))
    for f in range(1, 4):
        A.e("s_add_u32 %s, %s, %d" % (s(sH + f), s(sH), f * KB_PER_ROWBLK * 1024))
    A.wait_vm({"bias"})
    for nb in range(4):
        for hlf in range(2):
            src = vBIASRAW + 2 * nb + hlf
            A.e("v_lshlrev_b32 %s, 16, %s" % (v(vBIAS + 4 * nb + 2 * hlf), v(src)))
            A.e("v_and_b32 %s, 0xffff0000, %s" % (v(vBIAS + 4 * nb + 2 * hlf + 1), v(src)))

    def rd_ops(t, kk):
        slot = t % RING
        hi = slot // 2
        sb = (slot % 2) * CH_BYTES
        buf = kk
        ops = []
        for f in range(4):
            ops.append("ds_read_b128 %s, %s offset:%d" %
                       (v(vAF + buf * 16 + f * 4, 4), v(vAr + 2 * kk + hi), sb + f * 2048))
        for nb in range(4):
            for p in range(2):
                ops.append("ds_read_b64_tr_b16 %s, %s offset:%d" %
                           (v(vBF + buf * 16 + nb * 4 + 2 * p, 2), v(vBr + 2 * nb + hi),
                            sb + 16384 + kk * 8192 + p * 2048))
        return ops

    def mfmas(t, kk, ops):
        buf = kk
        first = (t == 0 and kk == 0)
        idx = 0
        for nb in range(4):
            for f in range(4):
                acc = vACC + (f * 4 + nb) * 4
                cop = v(vBIAS + 4 * nb, 4) if first else v(acc, 4)
                A.e("v_mfma_f32_16x16x32_bf16 %s, %s, %s, %s" %
                    (v(acc, 4), v(vBF + buf * 16 + nb * 4, 4), v(vAF + buf * 16 + f * 4, 4), cop))
                if idx < len(ops):
                    A.lds(ops[idx], "f")
                idx += 1
        assert idx >= len(ops)

    A.e("s_barrier")
    A.stamp(1)
    for op in rd_ops(0, 0):
        A.lds(op, "f")
    A.wait_lg()
    for t in range(NCH):
        A.c("==== chunk %d" % t)
        mfmas(t, 0, rd_ops(t, 1))
        A.wait_lg()
        if t + 1 < NCH:
            A.e("s_barrier")
            A.stamp(2 + t)
            mfmas(t, 1, rd_ops(t + 1, 0))
        else:
            mfmas(t, 1, [])
        A.wait_lg()
    A.c("==== epilogue")
    A.stamp(11)
    A.e("s_nop 7")
    A.e("s_nop 7")
    A.e("s_cmp_eq_u32 %s, 13" % s(sNT))
    A.e("s_cbranch_scc0 .Lk1_store_all")
    A.e("s_cmp_eq_u32 %s, 0" % s(sWN))
    A.e("s_cbranch_scc1 .Lk1_end")
    A.label(".Lk1_store_all")
    A.e("v_lshlrev_b32 %s, 6, %s" % (v(vHB), v(vI)))
    A.e("v_lshl_add_u32 %s, %s, 4, %s" % (v(vHB), v(vG), v(vHB)))
    for f in range(4):
        for j in range(2):
            R = vACC + (f * 4 + 2 * j) * 4
            for half in range(2):
                acc = vACC + (f * 4 + 2 * j + half) * 4
                for r in range(4):
                    A.e("v_max_f32 %s, 0, %s" % (v(acc + r), v(acc + r)))
                A.e("v_pk_mul_f32 %s, %s, %s" % (v(acc, 2), v(acc, 2), v(acc, 2)))
                A.e("v_pk_mul_f32 %s, %s, %s" % (v(acc + 2, 2), v(acc + 2, 2), v(acc + 2, 2)))
                A.e("v_cvt_pk_bf16_f32 %s, %s, %s" % (v(R + 2 * half), v(acc), v(acc + 1)))
                A.e("v_cvt_pk_bf16_f32 %s, %s, %s" % (v(R + 2 * half + 1), v(acc + 2), v(acc + 3)))
            A.e("s_nop 1")
            A.e("v_permlane32_swap_b32 %s, %s" % (v(R), v(R + 2)))
            A.e("v_permlane32_swap_b32 %s, %s" % (v(R + 1), v(R + 3)))
            A.e("s_nop 1")
            A.e("v_permlane16_swap_b32 %s, %s" % (v(R), v(R + 2)))
            A.e("v_permlane16_swap_b32 %s, %s" % (v(R + 1), v(R + 3)))
            A.e("buffer_store_dwordx4 %s, %s, %s, %s offen offset:%d" %
                (v(R, 4), v(vHB), s(S_WS, 4), s(sH + f), j * 1024))
    A.stamp(12)
    if A.instr:
        A.e("s_waitcnt vmcnt(0)")
    A.stamp(13)
    A.dump_stamps(16, 48, 4)
    A.e("s_branch .Lk1_end")
    A.vm = []
    A.lg = []

    A.label(".Lk1_producer")
    A.c("======== producer")
    vAoff, vBoff = 12, 13
    sPW = 44
    A.e("s_sub_u32 %s, %s, 4" % (s(sPW), s(sWAVE)))
    A.e("v_lshrrev_b32 %s, 3, %s" % (v(vT), v(vLANE)))
    A.e("v_and_b32 %s, 7, %s" % (v(vT + 1), v(vLANE)))
    A.e("v_xor_b32 %s, %s, %s" % (v(vT + 1), v(vT + 1), v(vT)))
    A.e("v_lshlrev_b32 %s, 4, %s" % (v(vT + 1), v(vT + 1)))
    A.e("v_mul_u32_u24 %s, %d, %s" % (v(vAoff), D * 2, v(vT)))
    A.e("v_add_u32 %s, %s, %s" % (v(vAoff), v(vAoff), v(vT + 1)))
    for par in range(2):
        A.e("v_add_u32 %s, %d, %s" % (v(vT), 4 * par, v(vG)))
        A.e("v_lshrrev_b32 %s, 1, %s" % (v(vT + 1), v(vI)))
        A.e("v_xor_b32 %s, %s, %s" % (v(vT + 1), v(vT + 1), v(vT)))
        A.e("v_lshlrev_b32 %s, 1, %s" % (v(vT + 1), v(vT + 1)))
        A.e("v_and_b32 %s, 1, %s" % (v(vT + 2), v(vI)))
        A.e("v_or_b32 %s, %s, %s" % (v(vT + 1), v(vT + 1), v(vT + 2)))
        A.e("v_lshlrev_b32 %s, 4, %s" % (v(vT + 1), v(vT + 1)))
        A.e("v_mul_u32_u24 %s, %d, %s" % (v(vBoff + par), F * 2, v(vG)))
        A.e("v_add_u32 %s, %s, %s" % (v(vBoff + par), v(vBoff + par), v(vT + 1)))
    A.e("s_mul_i32 %s, %s, %d" % (s(sAbase), s(sMB), 128 * D * 2))
    A.e("s_mul_i32 %s, %s, %d" % (s(sT0), s(sPW), 4 * 8 * D * 2))
    A.e("s_add_u32 %s, %s, %s" % (s(sAbase), s(sAbase), s(sT0)))
    A.e("s_lshl_b32 %s, %s, 12" % (s(sLA), s(sPW)))
    A.e("s_add_u32 %s, %s, 16384" % (s(sLB), s(sLA)))

    def sw01(e):
        return (e & ~3) | ((e & 1) << 1) | ((e >> 1) & 1)

    def p_issue(t):
        slot = t % RING
        A.c("---- issue chunk %d" % t)
        for aa in range(4):
            A.e("s_add_u32 m0, %s, %d" % (s(sLA), slot * CH_BYTES + aa * 1024))
            A.e("s_add_u32 %s, %s, %d" % (s(sSO), s(sAbase), aa * 8 * D * 2 + t * 128))
            A.vmem("buffer_load_dwordx4 %s, %s, %s offen lds" % (v(vAoff), s(S_X, 4), s(sSO)), ("c", t))
        for b in range(4):
            A.e("s_add_u32 m0, %s, %d" % (s(sLB), slot * CH_BYTES + b * 1024))
            A.e("s_add_u32 %s, %s, %d" % (s(sSO), s(sBbase), (64 * t + 4 * sw01(b)) * F * 2))
            A.vmem("buffer_load_dwordx4 %s, %s, %s offen lds" % (v(vBoff + (b & 1)), s(S_W, 4), s(sSO)), ("c", t))

    A.e("s_mul_i32 %s, %s, %d" % (s(sBbase), s(sPW), 16 * F * 2))
    A.e("s_add_u32 %s, %s, %s" % (s(sBbase), s(sBbase), s(sN0B)))
    p_issue(0)
    p_issue(1)
    for t in range(NCH):
        A.wait_vm({("c", t)})
        A.e("s_barrier")
        if t == 0:
            p_issue(2)
            p_issue(3)
        elif t + RING - 1 < NCH:
            p_issue(t + RING - 1)
    A.e("s_branch .Lk1_end")
    A.vm = []

    A.label(".Lk1_retile")
    A.c("======== w2 re-tile: job r = (q-28)*8 + xcd ; k-steps r, r+32")
    sR, sKS = 44, 45
    vD = 12
    vR = 20
    vSt = 26
    vFr = 32
    A.e("s_sub_u32 %s, %s, 28" % (s(sR), s(sQ)))
    A.e("s_lshl_b32 %s, %s, 3" % (s(sR), s(sR)))
    A.e("s_add_u32 %s, %s, %s" % (s(sR), s(sR), s(sXCD)))
    for e in range(5):
        A.e("s_mul_i32 %s, %s, 320" % (s(sT0), s(sWAVE)))
        A.e("s_add_u32 %s, %s, %d" % (s(sT0), s(sT0), 64 * e))
        A.e("v_add_u32 %s, %s, %s" % (v(vT), s(sT0), v(vLANE)))
        magic = ((1 << 20) + 79) // 80
        A.e("v_mul_u32_u24 %s, %d, %s" % (v(vT + 1), magic, v(vT)))
        A.e("v_lshrrev_b32 %s, 20, %s" % (v(vT + 1), v(vT + 1)))
        A.e("v_mul_u32_u24 %s, 80, %s" % (v(vT + 2), v(vT + 1)))
        A.e("v_sub_u32 %s, %s, %s" % (v(vT + 2), v(vT), v(vT + 2)))
        A.e("v_lshrrev_b32 %s, 1, %s" % (v(vT + 3), v(vT + 2)))
        A.e("v_xor_b32 %s, %s, %s" % (v(vT + 4), v(vT + 3), v(vT + 1)))
        A.e("v_and_b32 %s, 7, %s" % (v(vT + 4), v(vT + 4)))
        A.e("v_and_b32 %s, 0xfffffff8, %s" % (v(vT + 3), v(vT + 3)))
        A.e("v_or_b32 %s, %s, %s" % (v(vT + 3), v(vT + 3), v(vT + 4)))
        A.e("v_and_b32 %s, 1, %s" % (v(vT + 2), v(vT + 2)))
        A.e("v_lshl_add_u32 %s, %s, 1, %s" % (v(vT + 3), v(vT + 3), v(vT + 2)))
        swap23(A, vT + 2, vT + 1, vT + 4, vT + 5)
        A.e("v_mul_u32_u24 %s, %d, %s" % (v(vD + e), D * 2, v(vT + 2)))
        A.e("v_lshl_add_u32 %s, %s, 4, %s" % (v(vD + e), v(vT + 3), v(vD + e)))
    A.e("v_and_b32 %s, 1, %s" % (v(vT), v(vG)))
    A.e("v_lshlrev_b32 %s, 2, %s" % (v(vT), v(vT)))
    A.e("v_lshrrev_b32 %s, 2, %s" % (v(vT + 1), v(vI)))
    A.e("v_add_u32 %s, %s, %s" % (v(vT), v(vT), v(vT + 1)))
    A.e("v_lshrrev_b32 %s, 1, %s" % (v(vT + 1), v(vG)))
    A.e("v_lshl_add_u32 %s, %s, 4, %s" % (v(vT + 1), v(vT + 1), v(vT)))
    A.e("v_mul_u32_u24 %s, %d, %s" % (v(vT + 1), D * 2, v(vT + 1)))
    A.e("v_and_b32 %s, 3, %s" % (v(vT + 2), v(vI)))
    A.e("v_lshl_add_u32 %s, %s, 3, %s" % (v(vT + 1), v(vT + 2), v(vT + 1)))
    A.e("s_mul_i32 %s, %s, 5" % (s(sT1), s(sWAVE)))
    for j in range(5):
        A.e("v_mov_b32 %s, %d" % (v(vT + 2), j))
        A.e("v_add_u32 %s, %s, %s" % (v(vT + 2), s(sT1), v(vT + 2)))
        A.e("v_xor_b32 %s, %s, %s" % (v(vT + 3), v(vT + 2), v(vT)))
        A.e("v_and_b32 %s, 7, %s" % (v(vT + 3), v(vT + 3)))
        A.e("v_and_b32 %s, 0xfffffff8, %s" % (v(vT + 2), v(vT + 2)))
        A.e("v_or_b32 %s, %s, %s" % (v(vT + 2), v(vT + 2), v(vT + 3)))
        A.e("v_lshl_add_u32 %s, %s, 5, %s" % (v(vR + j), v(vT + 2), v(vT + 1)))
    A.e("v_lshlrev_b32 %s, 4, %s" % (v(vSt), v(vLANE)))
    A.e("s_mul_i32 %s, %s, 5120" % (s(sLA), s(sWAVE)))
    A.e("s_mov_b32 %s, %s" % (s(sKS), s(sR)))
    A.label(".Lk1_rt_loop")
    A.e("s_mul_i32 %s, %s, %d" % (s(sSO), s(sKS), 32 * D * 2))
    for e in range(5):
        A.e("s_add_u32 m0, %s, %d" % (s(sLA), e * 1024))
        A.e("s_nop 0")
        A.e("buffer_load_dwordx4 %s, %s, %s offen lds" % (v(vD + e), s(S_W2, 4), s(sSO)))
    A.e("s_waitcnt vmcnt(0)")
    A.e("s_barrier")
    for j in range(5):
        for p in range(2):
            A.e("ds_read_b64_tr_b16 %s, %s offset:%d" % (v(vFr + 4 * j + 2 * p, 2), v(vR + j), p * 8 * D * 2))
    A.e("s_waitcnt lgkmcnt(0)")
    A.e("s_barrier")
    A.e("s_mul_i32 %s, %s, 40" % (s(sT0), s(sKS)))
    A.e("s_add_u32 %s, %s, %s" % (s(sT0), s(sT0), s(sT1)))
    A.e("s_lshl_b32 %s, %s, 10" % (s(sT0), s(sT0)))
    A.e("s_add_u32 %s, %s, %d" % (s(sT0), s(sT0), W2T_OFF))
    for j in range(5):
        if j == 4:
            A.e("s_add_u32 %s, %s, 4096" % (s(sT0), s(sT0)))
        A.e("buffer_store_dwordx4 %s, %s, %s, %s offen offset:%d" %
            (v(vFr + 4 * j, 4), v(vSt), s(S_WS, 4), s(sT0), (j % 4) * 1024))
    A.e("s_add_u32 %s, %s, 32" % (s(sKS), s(sKS)))
    A.e("s_cmp_lt_u32 %s, %d" % (s(sKS), F // 32))
    A.e("s_cbranch_scc1 .Lk1_rt_loop")
    A.label(".Lk1_end")
    A.e("s_endpgm")
    A.vm = []
    A.lg = []


def gen_k2(A):
    KS = F // 32
    NCH = (KS + 3) // 4
    RING = 7
    KS_BYTES = 5 * 1024
    CH_BYTES = 4 * KS_BYTES
    LDS_BYTES = RING * CH_BYTES
    PDA = 12
    NBA = PDA + 1
    A.lds_bytes_k2 = LDS_BYTES
    S_WS, S_B, S_O = 4, 12, 16
    sXCD, sQ, sMT, sNT, sWAVE, sT0, sT1, sN0B = 24, 25, 26, 27, 28, 29, 30, 31
    sA, sB, sSO, sL = 32, 33, 34, 35
    vLANE, vI, vG, vT = 1, 2, 3, 4
    vLO, vLA = 12, 13

    A.l.append(".globl %s" % K2)
    A.l.append(".p2align 8")
    A.l.append(".type %s,@function" % K2)
    A.label(K2)
    A.e("s_cmp_ge_u32 s2, 256")
    A.e("s_cbranch_scc1 .Lk2_end")
    A.stamp(0)
    A.e("s_load_dwordx2 s[4:5], s[0:1], 56")
    A.e("s_load_dwordx2 s[12:13], s[0:1], 32")
    A.e("s_load_dwordx2 s[16:17], s[0:1], 40")
    A.e("s_and_b32 %s, s2, 7" % s(sXCD))
    A.e("s_lshr_b32 %s, s2, 3" % s(sQ))
    A.e("s_lshr_b32 %s, %s, 1" % (s(sMT), s(sXCD)))
    A.e("s_lshl_b32 %s, %s, 3" % (s(sMT), s(sMT)))
    A.e("s_lshr_b32 %s, %s, 2" % (s(sT0), s(sQ)))
    A.e("s_add_u32 %s, %s, %s" % (s(sMT), s(sMT), s(sT0)))
    A.e("s_and_b32 %s, %s, 1" % (s(sNT), s(sXCD)))
    A.e("s_lshl_b32 %s, %s, 2" % (s(sNT), s(sNT)))
    A.e("s_and_b32 %s, %s, 3" % (s(sT0), s(sQ)))
    A.e("s_add_u32 %s, %s, %s" % (s(sNT), s(sNT), s(sT0)))
    A.e("s_mul_i32 %s, %s, 160" % (s(sN0B), s(sNT)))
    A.e("v_lshrrev_b32 %s, 6, v0" % v(vT))
    A.e("v_and_b32 %s, 63, v0" % v(vLANE))
    A.e("s_nop 0")
    A.e("v_readfirstlane_b32 %s, %s" % (s(sWAVE), v(vT)))
    A.e("v_and_b32 %s, 15, %s" % (v(vI), v(vLANE)))
    A.e("v_lshrrev_b32 %s, 4, %s" % (v(vG), v(vLANE)))
    A.e("v_lshlrev_b32 %s, 4, %s" % (v(vLO), v(vLANE)))
    A.e("s_waitcnt lgkmcnt(0)")
    srd(A, S_WS, 56, WS_BYTES)
    srd(A, S_B, 32, D * 2)
    srd(A, S_O, 40, M * D * 2)
    A.e("s_and_b32 %s, %s, 3" % (s(sT1), s(sWAVE)))
    A.e("s_cmp_ge_u32 %s, 4" % s(sWAVE))
    A.e("s_cbranch_scc1 .Lk2_producer")

    A.c("======== consumer: 16-row strip cw, all 80 columns")
    vO, vBI = 14, 15
    vRA, vRB_ = 16, 17
    vBIASRAW = 24
    vBIAS = 34
    vACC = 56
    vFB = 76
    vAF = 136
    sAc = 36
    A.e("v_lshlrev_b32 %s, 3, %s" % (v(vBI), v(vG)))
    A.e("v_add_u32 %s, %s, %s" % (v(vBI), s(sN0B), v(vBI)))
    for nu in range(5):
        A.vmem("buffer_load_dwordx2 %s, %s, %s, 0 offen offset:%d" %
               (v(vBIASRAW + 2 * nu, 2), v(vBI), s(S_B, 4), nu * 32), "bias")
    A.e("v_lshlrev_b32 %s, 6, %s" % (v(vRA), v(vI)))
    A.e("v_lshl_add_u32 %s, %s, 4, %s" % (v(vRA), v(vG), v(vRA)))
    A.e("s_lshl_b32 %s, %s, 2" % (s(sAc), s(sMT)))
    A.e("s_add_u32 %s, %s, %s" % (s(sAc), s(sAc), s(sT1)))
    A.e("s_mul_i32 %s, %s, %d" % (s(sAc), s(sAc), KB_PER_ROWBLK * 1024))

    def a_load(ks):
        A.e("s_add_u32 %s, %s, %d" % (s(sSO), s(sAc), ks * 1024))
        A.vmem("buffer_load_dwordx4 %s, %s, %s, %s offen" %
               (v(vAF + (ks % NBA) * 4, 4), v(vRA), s(S_WS, 4), s(sSO)), ("a", ks))
    for ks in range(PDA):
        a_load(ks)
    A.e("v_mov_b32 %s, %s" % (v(vRB_), v(vLO)))
    for r in range(1, RING):
        A.e("v_add_u32 %s, %d, %s" % (v(vRB_ + r), r * CH_BYTES, v(vRB_)))
    A.e("s_lshl_b32 %s, %s, 6" % (s(sT0), s(sMT)))
    A.e("s_lshl_b32 %s, %s, 4" % (s(sSO), s(sT1)))
    A.e("s_add_u32 %s, %s, %s" % (s(sT0), s(sT0), s(sSO)))
    A.e("v_add_u32 %s, %s, %s" % (v(vO), s(sT0), v(vI)))
    A.e("v_mul_u32_u24 %s, %d, %s" % (v(vO), D * 2, v(vO)))
    A.e("v_add_u32 %s, %s, %s" % (v(vO), v(vBI), v(vO)))
    A.wait_vm({"bias"})
    for nu in range(5):
        for hlf in range(2):
            src = vBIASRAW + 2 * nu + hlf
            A.e("v_lshlrev_b32 %s, 16, %s" % (v(vBIAS + 4 * nu + 2 * hlf), v(src)))
            A.e("v_and_b32 %s, 0xffff0000, %s" % (v(vBIAS + 4 * nu + 2 * hlf + 1), v(src)))

    NB3 = 3

    def rd_ops(ks):
        c = ks // 4
        kk = ks % 4
        slot = c % RING
        sb = kk * KS_BYTES
        buf = ks % NB3
        ops = []
        for nu in range(5):
            ops.append("ds_read_b128 %s, %s offset:%d" % (v(vFB + buf * 20 + nu * 4, 4), v(vRB_ + slot), sb + nu * 1024))
        return ops

    def mfmas(ks, ops):
        buf = ks % NB3
        for nu in range(5):
            acc = vACC + nu * 4
            cop = v(vBIAS + 4 * nu, 4) if ks == 0 else v(acc, 4)
            A.e("v_mfma_f32_16x16x32_bf16 %s, %s, %s, %s" %
                (v(acc, 4), v(vFB + buf * 20 + nu * 4, 4), v(vAF + (ks % NBA) * 4, 4), cop))
            for op in ops[nu:nu + 1]:
                A.lds(op, ("f", ks + 2))
            if nu == 2 and ks + PDA < KS:
                a_load(ks + PDA)

    A.e("s_barrier")
    A.stamp(1)
    for op in rd_ops(0):
        A.lds(op, ("f", 0))
    for op in rd_ops(1):
        A.lds(op, ("f", 1))
    for ks in range(KS):
        if ks % 4 == 0:
            A.c("==== chunk %d" % (ks // 4))
        A.wait_lg({("f", ks)})
        A.wait_vm({("a", ks)})
        nxt = ks + 2
        if nxt < KS:
            if nxt % 4 == 0:
                A.wait_lg()
                A.e("s_barrier")
            mfmas(ks, rd_ops(nxt))
        else:
            mfmas(ks, [])
    A.stamp(2)
    A.c("==== epilogue")
    A.e("s_nop 7")
    A.e("s_nop 7")
    for nu in range(5):
        acc = vACC + nu * 4
        A.e("v_cvt_pk_bf16_f32 %s, %s, %s" % (v(acc), v(acc), v(acc + 1)))
        A.e("v_cvt_pk_bf16_f32 %s, %s, %s" % (v(acc + 1), v(acc + 2), v(acc + 3)))
        A.e("buffer_store_dwordx2 %s, %s, %s, 0 offen offset:%d" % (v(acc, 2), v(vO), s(S_O, 4), nu * 32))
    A.stamp(3)
    if A.instr:
        A.e("s_waitcnt vmcnt(0)")
    A.stamp(4)
    A.dump_stamps(16, 48, 4)
    A.e("s_branch .Lk2_end")
    A.vm = []
    A.lg = []

    A.label(".Lk2_producer")
    A.c("======== producer: pw = sT1 ; loads k-step 4c+pw of chunk c")
    A.e("s_mul_i32 %s, %s, %d" % (s(sA), s(sMT), 4 * KB_PER_ROWBLK))
    A.e("s_add_u32 %s, %s, %s" % (s(sA), s(sA), s(sT1)))
    A.e("s_lshl_b32 %s, %s, 10" % (s(sA), s(sA)))
    A.e("s_mul_i32 %s, %s, 40" % (s(sB), s(sT1)))
    A.e("s_mul_i32 %s, %s, 5" % (s(sT0), s(sNT)))
    A.e("s_add_u32 %s, %s, %s" % (s(sB), s(sB), s(sT0)))
    A.e("s_lshl_b32 %s, %s, 10" % (s(sB), s(sB)))
    A.e("s_add_u32 %s, %s, %d" % (s(sB), s(sB), W2T_OFF))
    A.e("s_mul_i32 %s, %s, %d" % (s(sL), s(sT1), KS_BYTES))

    def p_issue(c):
        slot = c % RING
        partial = (4 * c + 3 >= KS)
        A.c("---- issue chunk %d" % c)
        if partial:
            A.e("s_cmp_ge_u32 %s, %d" % (s(sT1), KS - 4 * c))
            A.e("s_cbranch_scc1 .Lk2_pskip%d" % c)
        for nu in range(5):
            A.e("s_add_u32 m0, %s, %d" % (s(sL), slot * CH_BYTES + nu * 1024))
            A.e("s_add_u32 %s, %s, %d" % (s(sSO), s(sB), c * 4 * 40 * 1024 + nu * 1024))
            A.vmem("buffer_load_dwordx4 %s, %s, %s offen lds" % (v(vLO), s(S_WS, 4), s(sSO)), ("c", c))
        if partial:
            A.label(".Lk2_pskip%d" % c)
            A.vm = [x for x in A.vm if x != ("c", c)]

    p_issue(0)
    p_issue(1)
    p_issue(2)
    for c in range(NCH):
        if 4 * c + 3 >= KS:
            A.e("s_waitcnt vmcnt(0)")
            A.vm = []
        else:
            A.wait_vm({("c", c)})
        A.e("s_barrier")
        if c == 0:
            for cc in range(3, RING):
                p_issue(cc)
        elif c + RING - 1 < NCH:
            p_issue(c + RING - 1)
    A.label(".Lk2_end")
    A.e("s_endpgm")
    A.vm = []
    A.lg = []


def main():
    A = Asm()
    if os.environ.get("INSTR"):
        A.instr = True
        A.instr_wg = int(os.environ["INSTR"])
    gen_k1(A)
    gen_k2(A)
    out = HEADER
    out += "; @launch kernel=%s grid=(256,1,1) block=(512,1,1) lds=%d\n" % (K1, A.lds_bytes_k1)
    out += "; @launch kernel=%s grid=(256,1,1) block=(512,1,1) lds=%d\n" % (K2, A.lds_bytes_k2)
    out += '.amdgcn_target "amdgcn-amd-amdhsa--gfx950"\n.text\n'
    out += A.text()
    out += '.section .rodata,"a"\n.p2align 6\n'
    out += kd(K1, 256, 256)
    out += ".p2align 6\n"
    out += kd(K2, 256, 256)
    path = sys.argv[1] if len(sys.argv) > 1 else OUT
    open(path, "w").write(out)
    print("wrote", path, len(out), "bytes")


if __name__ == "__main__":
    main()
```

```python
import os
import sys

from gen import Asm, v, a, s, kd, srd, swap23, HEADER

M, D, F = 2048, 640, 1728
OUT = "standalone__dense_activation_squared_relu__prompt.s"
K1 = "standalone__dense_activation_squared_relu__prompt_kernel"
K2 = "mlp_gemm2_kernel"

H_BYTES = M * F * 2
W2T_OFF = 8 << 20
W2T_BYTES = F * D * 2
WS_BYTES = W2T_OFF + W2T_BYTES
KB_PER_ROWBLK = F // 32


def gen_k1(A):
    RING = int(os.environ.get("K1RING", "4"))
    CH_BYTES = 32768
    NCH = D // 64
    LDS_BYTES = RING * CH_BYTES
    A.lds_bytes_k1 = LDS_BYTES

    S_X, S_W, S_B, S_WS, S_W2 = 4, 8, 12, 16, 20
    sXCD, sQ, sMB, sNT, sWAVE, sT0, sT1, sN0B, sM0 = 24, 25, 26, 27, 28, 29, 30, 31, 32
    sAbase, sBbase, sLA, sLB, sSO = 33, 34, 35, 36, 37
    sH = 40
    vLANE, vI, vG, vT = 1, 2, 3, 4

    A.l.append(".globl %s" % K1)
    A.l.append(".p2align 8")
    A.l.append(".type %s,@function" % K1)
    A.label(K1)
    A.e("s_cmp_ge_u32 s2, 256")
    A.e("s_cbranch_scc1 .Lk1_end")
    A.stamp(0)
    A.e("s_load_dwordx2 s[4:5], s[0:1], 0")
    A.e("s_load_dwordx2 s[8:9], s[0:1], 8")
    A.e("s_load_dwordx2 s[12:13], s[0:1], 16")
    A.e("s_load_dwordx2 s[16:17], s[0:1], 56")
    A.e("s_load_dwordx2 s[20:21], s[0:1], 24")
    A.e("s_and_b32 %s, s2, 7" % s(sXCD))
    A.e("s_lshr_b32 %s, s2, 3" % s(sQ))
    A.e("v_lshrrev_b32 %s, 6, v0" % v(vT))
    A.e("v_and_b32 %s, 63, v0" % v(vLANE))
    A.e("s_nop 0")
    A.e("v_readfirstlane_b32 %s, %s" % (s(sWAVE), v(vT)))
    A.e("v_and_b32 %s, 15, %s" % (v(vI), v(vLANE)))
    A.e("v_lshrrev_b32 %s, 4, %s" % (v(vG), v(vLANE)))
    A.e("s_mul_i32 %s, %s, 37" % (s(sT0), s(sQ)))
    A.e("s_lshr_b32 %s, %s, 8" % (s(sT0), s(sT0)))
    A.e("s_mul_i32 %s, %s, 7" % (s(sT1), s(sT0)))
    A.e("s_sub_u32 %s, %s, %s" % (s(sT1), s(sQ), s(sT1)))
    A.e("s_lshr_b32 %s, %s, 1" % (s(sMB), s(sXCD)))
    A.e("s_lshl_b32 %s, %s, 2" % (s(sMB), s(sMB)))
    A.e("s_add_u32 %s, %s, %s" % (s(sMB), s(sMB), s(sT0)))
    A.e("s_and_b32 %s, %s, 1" % (s(sNT), s(sXCD)))
    A.e("s_mul_i32 %s, %s, 7" % (s(sNT), s(sNT)))
    A.e("s_add_u32 %s, %s, %s" % (s(sNT), s(sNT), s(sT1)))
    A.e("s_lshl_b32 %s, %s, 8" % (s(sN0B), s(sNT)))
    A.e("s_cmp_eq_u32 %s, 13" % s(sNT))
    A.e("s_cselect_b32 %s, 3200, %s" % (s(sN0B), s(sN0B)))
    A.e("s_waitcnt lgkmcnt(0)")
    srd(A, S_X, 0, M * D * 2)
    srd(A, S_W, 8, D * F * 2)
    srd(A, S_B, 16, F * 2)
    srd(A, S_WS, 56, WS_BYTES)
    srd(A, S_W2, 24, F * D * 2)
    A.e("s_cmp_ge_u32 %s, 28" % s(sQ))
    A.e("s_cbranch_scc1 .Lk1_retile")
    A.e("s_cmp_ge_u32 %s, 4" % s(sWAVE))
    A.e("s_cbranch_scc1 .Lk1_producer")

    A.c("======== consumer")
    NH = (RING + 1) // 2
    vAr = 12
    vBr = 18
    vHB, vBI = 30, 31
    vBIASRAW = 32
    vBIAS = 40
    vACC = 64
    vAF = 128
    vBF = 160
    sWM, sWN = 44, 45
    A.e("s_lshr_b32 %s, %s, 1" % (s(sWM), s(sWAVE)))
    A.e("s_and_b32 %s, %s, 1" % (s(sWN), s(sWAVE)))
    A.e("s_lshl_b32 %s, %s, 7" % (s(sT0), s(sWN)))
    A.e("s_add_u32 %s, %s, %s" % (s(sT0), s(sT0), s(sN0B)))
    A.e("v_lshlrev_b32 %s, 3, %s" % (v(vBI), v(vG)))
    A.e("v_add_u32 %s, %s, %s" % (v(vBI), s(sT0), v(vBI)))
    for nb in range(4):
        A.vmem("buffer_load_dwordx2 %s, %s, %s, 0 offen offset:%d" %
               (v(vBIASRAW + 2 * nb, 2), v(vBI), s(S_B, 4), nb * 32), "bias")
    A.e("s_lshl_b32 %s, %s, 6" % (s(sT0), s(sWM)))
    A.e("v_add_u32 %s, %s, %s" % (v(vT), s(sT0), v(vI)))
    A.e("v_lshlrev_b32 %s, 7, %s" % (v(vT), v(vT)))
    A.e("v_and_b32 %s, 7, %s" % (v(vT + 1), v(vI)))
    for kk in range(2):
        A.e("v_add_u32 %s, %d, %s" % (v(vT + 2), 4 * kk, v(vG)))
        A.e("v_xor_b32 %s, %s, %s" % (v(vT + 2), v(vT + 2), v(vT + 1)))
        A.e("v_lshl_add_u32 %s, %s, 4, %s" % (v(vAr + NH * kk), v(vT + 2), v(vT)))
        for h in range(1, NH):
            A.e("v_add_u32 %s, %d, %s" % (v(vAr + NH * kk + h), h * 0x10000, v(vAr + NH * kk)))
    A.e("v_and_b32 %s, 1, %s" % (v(vT), v(vG)))
    A.e("v_lshlrev_b32 %s, 2, %s" % (v(vT), v(vT)))
    A.e("v_lshrrev_b32 %s, 2, %s" % (v(vT + 1), v(vI)))
    A.e("v_add_u32 %s, %s, %s" % (v(vT), v(vT), v(vT + 1)))
    A.e("v_lshrrev_b32 %s, 1, %s" % (v(vT + 1), v(vG)))
    A.e("v_lshl_add_u32 %s, %s, 4, %s" % (v(vT + 1), v(vT + 1), v(vT)))
    A.e("v_lshlrev_b32 %s, 8, %s" % (v(vT + 1), v(vT + 1)))
    A.e("v_and_b32 %s, 3, %s" % (v(vT + 2), v(vI)))
    A.e("v_lshl_add_u32 %s, %s, 3, %s" % (v(vT + 1), v(vT + 2), v(vT + 1)))
    A.e("s_lshl_b32 %s, %s, 2" % (s(sT0), s(sWN)))
    for nb in range(4):
        A.e("v_mov_b32 %s, %d" % (v(vT + 2), nb))
        A.e("v_add_u32 %s, %s, %s" % (v(vT + 2), s(sT0), v(vT + 2)))
        A.e("v_xor_b32 %s, %s, %s" % (v(vT + 2), v(vT + 2), v(vT)))
        A.e("v_lshl_add_u32 %s, %s, 5, %s" % (v(vBr + NH * nb), v(vT + 2), v(vT + 1)))
        for h in range(1, NH):
            A.e("v_add_u32 %s, %d, %s" % (v(vBr + NH * nb + h), h * 0x10000, v(vBr + NH * nb)))
    A.e("v_lshlrev_b32 %s, 6, %s" % (v(vHB), v(vI)))
    A.e("v_lshl_add_u32 %s, %s, 3, %s" % (v(vHB), v(vG), v(vHB)))
    A.e("s_lshl_b32 %s, %s, 3" % (s(sT0), s(sMB)))
    A.e("s_lshl_b32 %s, %s, 2" % (s(sT1), s(sWM)))
    A.e("s_add_u32 %s, %s, %s" % (s(sT0), s(sT0), s(sT1)))
    A.e("s_mul_i32 %s, %s, %d" % (s(sT0), s(sT0), KB_PER_ROWBLK))
    A.e("s_lshr_b32 %s, %s, 6" % (s(sT1), s(sN0B)))
    A.e("s_add_u32 %s, %s, %s" % (s(sT0), s(sT0), s(sT1)))
    A.e("s_lshl_b32 %s, %s, 1" % (s(sT1), s(sWN)))
    A.e("s_add_u32 %s, %s, %s" % (s(sT0), s(sT0), s(sT1)))
    A.e("s_lshl_b32 %s, %s, 10" % (s(sH), s(sT0)))
    for f in range(1, 4):
        A.e("s_add_u32 %s, %s, %d" % (s(sH + f), s(sH), f * KB_PER_ROWBLK * 1024))
    A.wait_vm({"bias"})
    for nb in range(4):
        for hlf in range(2):
            src = vBIASRAW + 2 * nb + hlf
            A.e("v_lshlrev_b32 %s, 16, %s" % (v(vBIAS + 4 * nb + 2 * hlf), v(src)))
            A.e("v_and_b32 %s, 0xffff0000, %s" % (v(vBIAS + 4 * nb + 2 * hlf + 1), v(src)))

    def rd_ops(t, kk):
        slot = t % RING
        hi = slot // 2
        sb = (slot % 2) * CH_BYTES
        buf = kk
        ops = []
        for f in range(4):
            ops.append("ds_read_b128 %s, %s offset:%d" %
                       (v(vAF + buf * 16 + f * 4, 4), v(vAr + NH * kk + hi), sb + f * 2048))
        for nb in range(4):
            for p in range(2):
                ops.append("ds_read_b64_tr_b16 %s, %s offset:%d" %
                           (v(vBF + buf * 16 + nb * 4 + 2 * p, 2), v(vBr + NH * nb + hi),
                            sb + 16384 + kk * 8192 + p * 2048))
        return ops

    def mfmas(t, kk, ops):
        buf = kk
        first = (t == 0 and kk == 0)
        idx = 0
        for nb in range(4):
            for f in range(4):
                acc = vACC + (f * 4 + nb) * 4
                cop = v(vBIAS + 4 * nb, 4) if first else v(acc, 4)
                A.e("v_mfma_f32_16x16x32_bf16 %s, %s, %s, %s" %
                    (v(acc, 4), v(vBF + buf * 16 + nb * 4, 4), v(vAF + buf * 16 + f * 4, 4), cop))
                if idx < len(ops):
                    A.lds(ops[idx], "f")
                idx += 1
        assert idx >= len(ops)

    A.e("s_barrier")
    A.stamp(1)
    for op in rd_ops(0, 0):
        A.lds(op, "f")
    A.wait_lg()
    for t in range(NCH):
        A.c("==== chunk %d" % t)
        mfmas(t, 0, rd_ops(t, 1))
        A.wait_lg()
        if t + 1 < NCH:
            A.e("s_barrier")
            A.stamp(2 + t)
            mfmas(t, 1, rd_ops(t + 1, 0))
        else:
            mfmas(t, 1, [])
        A.wait_lg()
    A.c("==== epilogue")
    A.stamp(11)
    A.e("s_nop 7")
    A.e("s_nop 7")
    A.e("s_cmp_eq_u32 %s, 13" % s(sNT))
    A.e("s_cbranch_scc0 .Lk1_store_all")
    A.e("s_cmp_eq_u32 %s, 0" % s(sWN))
    A.e("s_cbranch_scc1 .Lk1_end")
    A.label(".Lk1_store_all")
    A.e("v_lshlrev_b32 %s, 6, %s" % (v(vHB), v(vI)))
    A.e("v_lshl_add_u32 %s, %s, 4, %s" % (v(vHB), v(vG), v(vHB)))
    for f in range(4):
        for j in range(2):
            R = vACC + (f * 4 + 2 * j) * 4
            for half in range(2):
                acc = vACC + (f * 4 + 2 * j + half) * 4
                for r in range(4):
                    A.e("v_max_f32 %s, 0, %s" % (v(acc + r), v(acc + r)))
                A.e("v_pk_mul_f32 %s, %s, %s" % (v(acc, 2), v(acc, 2), v(acc, 2)))
                A.e("v_pk_mul_f32 %s, %s, %s" % (v(acc + 2, 2), v(acc + 2, 2), v(acc + 2, 2)))
                A.e("v_cvt_pk_bf16_f32 %s, %s, %s" % (v(R + 2 * half), v(acc), v(acc + 1)))
                A.e("v_cvt_pk_bf16_f32 %s, %s, %s" % (v(R + 2 * half + 1), v(acc + 2), v(acc + 3)))
            A.e("s_nop 1")
            A.e("v_permlane32_swap_b32 %s, %s" % (v(R), v(R + 2)))
            A.e("v_permlane32_swap_b32 %s, %s" % (v(R + 1), v(R + 3)))
            A.e("s_nop 1")
            A.e("v_permlane16_swap_b32 %s, %s" % (v(R), v(R + 2)))
            A.e("v_permlane16_swap_b32 %s, %s" % (v(R + 1), v(R + 3)))
            A.e("buffer_store_dwordx4 %s, %s, %s, %s offen offset:%d" %
                (v(R, 4), v(vHB), s(S_WS, 4), s(sH + f), j * 1024))
    A.stamp(12)
    if A.instr:
        A.e("s_waitcnt vmcnt(0)")
    A.stamp(13)
    A.dump_stamps(16, 48, 4)
    A.e("s_branch .Lk1_end")
    A.vm = []
    A.lg = []

    A.label(".Lk1_producer")
    A.c("======== producer")
    vAoff, vBoff = 12, 13
    sPW = 44
    A.e("s_sub_u32 %s, %s, 4" % (s(sPW), s(sWAVE)))
    A.e("v_lshrrev_b32 %s, 3, %s" % (v(vT), v(vLANE)))
    A.e("v_and_b32 %s, 7, %s" % (v(vT + 1), v(vLANE)))
    A.e("v_xor_b32 %s, %s, %s" % (v(vT + 1), v(vT + 1), v(vT)))
    A.e("v_lshlrev_b32 %s, 4, %s" % (v(vT + 1), v(vT + 1)))
    A.e("v_mul_u32_u24 %s, %d, %s" % (v(vAoff), D * 2, v(vT)))
    A.e("v_add_u32 %s, %s, %s" % (v(vAoff), v(vAoff), v(vT + 1)))
    for par in range(2):
        A.e("v_add_u32 %s, %d, %s" % (v(vT), 4 * par, v(vG)))
        A.e("v_lshrrev_b32 %s, 1, %s" % (v(vT + 1), v(vI)))
        A.e("v_xor_b32 %s, %s, %s" % (v(vT + 1), v(vT + 1), v(vT)))
        A.e("v_lshlrev_b32 %s, 1, %s" % (v(vT + 1), v(vT + 1)))
        A.e("v_and_b32 %s, 1, %s" % (v(vT + 2), v(vI)))
        A.e("v_or_b32 %s, %s, %s" % (v(vT + 1), v(vT + 1), v(vT + 2)))
        A.e("v_lshlrev_b32 %s, 4, %s" % (v(vT + 1), v(vT + 1)))
        A.e("v_mul_u32_u24 %s, %d, %s" % (v(vBoff + par), F * 2, v(vG)))
        A.e("v_add_u32 %s, %s, %s" % (v(vBoff + par), v(vBoff + par), v(vT + 1)))
    A.e("s_mul_i32 %s, %s, %d" % (s(sAbase), s(sMB), 128 * D * 2))
    A.e("s_mul_i32 %s, %s, %d" % (s(sT0), s(sPW), 4 * 8 * D * 2))
    A.e("s_add_u32 %s, %s, %s" % (s(sAbase), s(sAbase), s(sT0)))
    A.e("s_lshl_b32 %s, %s, 12" % (s(sLA), s(sPW)))
    A.e("s_add_u32 %s, %s, 16384" % (s(sLB), s(sLA)))

    def sw01(e):
        return (e & ~3) | ((e & 1) << 1) | ((e >> 1) & 1)

    def p_issue(t):
        slot = t % RING
        A.c("---- issue chunk %d" % t)
        for aa in range(4):
            A.e("s_add_u32 m0, %s, %d" % (s(sLA), slot * CH_BYTES + aa * 1024))
            A.e("s_add_u32 %s, %s, %d" % (s(sSO), s(sAbase), aa * 8 * D * 2 + t * 128))
            A.vmem("buffer_load_dwordx4 %s, %s, %s offen lds" % (v(vAoff), s(S_X, 4), s(sSO)), ("c", t))
        for b in range(4):
            A.e("s_add_u32 m0, %s, %d" % (s(sLB), slot * CH_BYTES + b * 1024))
            A.e("s_add_u32 %s, %s, %d" % (s(sSO), s(sBbase), (64 * t + 4 * sw01(b)) * F * 2))
            A.vmem("buffer_load_dwordx4 %s, %s, %s offen lds" % (v(vBoff + (b & 1)), s(S_W, 4), s(sSO)), ("c", t))

    A.e("s_mul_i32 %s, %s, %d" % (s(sBbase), s(sPW), 16 * F * 2))
    A.e("s_add_u32 %s, %s, %s" % (s(sBbase), s(sBbase), s(sN0B)))
    PREFETCH = os.environ.get("PREFETCH", "0") == "1"

    def l2_prefetch():
        vPf, vJ = 20, 21
        A.c("---- L2 prefetch of chunks 4..9")
        A.e("s_cmp_ge_u32 %s, 2" % s(sPW))
        A.e("s_cbranch_scc1 .Lk1_pf_w")
        A.e("s_lshl_b32 %s, %s, 7" % (s(sT0), s(sMB)))
        A.e("s_lshl_b32 %s, %s, 6" % (s(sT1), s(sPW)))
        A.e("s_add_u32 %s, %s, %s" % (s(sT0), s(sT0), s(sT1)))
        A.e("v_add_u32 %s, %s, %s" % (v(vPf), s(sT0), v(vLANE)))
        A.e("v_mul_u32_u24 %s, %d, %s" % (v(vPf), D * 2, v(vPf)))
        for q in range(6):
            A.e("buffer_load_dword %s, %s, %s, 0 offen offset:%d" % (v(vJ), v(vPf), s(S_X, 4), (4 + q) * 128))
        A.e("s_branch .Lk1_pf_done")
        A.label(".Lk1_pf_w")
        A.e("s_sub_u32 %s, %s, 2" % (s(sT0), s(sPW)))
        A.e("s_mul_i32 %s, %s, 192" % (s(sT0), s(sT0)))
        A.e("s_add_u32 %s, %s, 256" % (s(sT0), s(sT0)))
        A.e("v_add_u32 %s, %s, %s" % (v(vPf), s(sT0), v(vLANE)))
        A.e("v_mul_u32_u24 %s, %d, %s" % (v(vPf), F * 2, v(vPf)))
        A.e("v_add_u32 %s, %s, %s" % (v(vPf), s(sN0B), v(vPf)))
        for q in range(6):
            A.e("s_mov_b32 %s, %d" % (s(sT0), (q >> 1) * 64 * F * 2))
            A.e("buffer_load_dword %s, %s, %s, %s offen offset:%d" % (v(vJ), v(vPf), s(S_W, 4), s(sT0), (q & 1) * 128))
        A.label(".Lk1_pf_done")
        for q in range(6):
            A.vm.append("pf")
    p_issue(0)
    p_issue(1)
    for t in range(NCH):
        A.wait_vm({("c", t)})
        A.e("s_barrier")
        if t == 0:
            for tt in range(2, RING):
                p_issue(tt)
            if PREFETCH:
                l2_prefetch()
        elif t + RING - 1 < NCH:
            p_issue(t + RING - 1)
    A.e("s_branch .Lk1_end")
    A.vm = []

    A.label(".Lk1_retile")
    A.c("======== w2 re-tile: job r = (q-28)*8 + xcd ; k-steps r, r+32")
    sR, sKS = 44, 45
    vD = 12
    vR = 20
    vSt = 26
    vFr = 32
    A.e("s_sub_u32 %s, %s, 28" % (s(sR), s(sQ)))
    A.e("s_lshl_b32 %s, %s, 3" % (s(sR), s(sR)))
    A.e("s_add_u32 %s, %s, %s" % (s(sR), s(sR), s(sXCD)))
    for e in range(5):
        A.e("s_mul_i32 %s, %s, 320" % (s(sT0), s(sWAVE)))
        A.e("s_add_u32 %s, %s, %d" % (s(sT0), s(sT0), 64 * e))
        A.e("v_add_u32 %s, %s, %s" % (v(vT), s(sT0), v(vLANE)))
        magic = ((1 << 20) + 79) // 80
        A.e("v_mul_u32_u24 %s, %d, %s" % (v(vT + 1), magic, v(vT)))
        A.e("v_lshrrev_b32 %s, 20, %s" % (v(vT + 1), v(vT + 1)))
        A.e("v_mul_u32_u24 %s, 80, %s" % (v(vT + 2), v(vT + 1)))
        A.e("v_sub_u32 %s, %s, %s" % (v(vT + 2), v(vT), v(vT + 2)))
        A.e("v_lshrrev_b32 %s, 1, %s" % (v(vT + 3), v(vT + 2)))
        A.e("v_xor_b32 %s, %s, %s" % (v(vT + 4), v(vT + 3), v(vT + 1)))
        A.e("v_and_b32 %s, 7, %s" % (v(vT + 4), v(vT + 4)))
        A.e("v_and_b32 %s, 0xfffffff8, %s" % (v(vT + 3), v(vT + 3)))
        A.e("v_or_b32 %s, %s, %s" % (v(vT + 3), v(vT + 3), v(vT + 4)))
        A.e("v_and_b32 %s, 1, %s" % (v(vT + 2), v(vT + 2)))
        A.e("v_lshl_add_u32 %s, %s, 1, %s" % (v(vT + 3), v(vT + 3), v(vT + 2)))
        swap23(A, vT + 2, vT + 1, vT + 4, vT + 5)
        A.e("v_mul_u32_u24 %s, %d, %s" % (v(vD + e), D * 2, v(vT + 2)))
        A.e("v_lshl_add_u32 %s, %s, 4, %s" % (v(vD + e), v(vT + 3), v(vD + e)))
    A.e("v_and_b32 %s, 1, %s" % (v(vT), v(vG)))
    A.e("v_lshlrev_b32 %s, 2, %s" % (v(vT), v(vT)))
    A.e("v_lshrrev_b32 %s, 2, %s" % (v(vT + 1), v(vI)))
    A.e("v_add_u32 %s, %s, %s" % (v(vT), v(vT), v(vT + 1)))
    A.e("v_lshrrev_b32 %s, 1, %s" % (v(vT + 1), v(vG)))
    A.e("v_lshl_add_u32 %s, %s, 4, %s" % (v(vT + 1), v(vT + 1), v(vT)))
    A.e("v_mul_u32_u24 %s, %d, %s" % (v(vT + 1), D * 2, v(vT + 1)))
    A.e("v_and_b32 %s, 3, %s" % (v(vT + 2), v(vI)))
    A.e("v_lshl_add_u32 %s, %s, 3, %s" % (v(vT + 1), v(vT + 2), v(vT + 1)))
    A.e("s_mul_i32 %s, %s, 5" % (s(sT1), s(sWAVE)))
    for j in range(5):
        A.e("v_mov_b32 %s, %d" % (v(vT + 2), j))
        A.e("v_add_u32 %s, %s, %s" % (v(vT + 2), s(sT1), v(vT + 2)))
        A.e("v_xor_b32 %s, %s, %s" % (v(vT + 3), v(vT + 2), v(vT)))
        A.e("v_and_b32 %s, 7, %s" % (v(vT + 3), v(vT + 3)))
        A.e("v_and_b32 %s, 0xfffffff8, %s" % (v(vT + 2), v(vT + 2)))
        A.e("v_or_b32 %s, %s, %s" % (v(vT + 2), v(vT + 2), v(vT + 3)))
        A.e("v_lshl_add_u32 %s, %s, 5, %s" % (v(vR + j), v(vT + 2), v(vT + 1)))
    A.e("v_lshlrev_b32 %s, 4, %s" % (v(vSt), v(vLANE)))
    A.e("s_mul_i32 %s, %s, 5120" % (s(sLA), s(sWAVE)))
    A.e("s_mov_b32 %s, %s" % (s(sKS), s(sR)))
    A.label(".Lk1_rt_loop")
    A.e("s_mul_i32 %s, %s, %d" % (s(sSO), s(sKS), 32 * D * 2))
    for e in range(5):
        A.e("s_add_u32 m0, %s, %d" % (s(sLA), e * 1024))
        A.e("s_nop 0")
        A.e("buffer_load_dwordx4 %s, %s, %s offen lds" % (v(vD + e), s(S_W2, 4), s(sSO)))
    A.e("s_waitcnt vmcnt(0)")
    A.e("s_barrier")
    for j in range(5):
        for p in range(2):
            A.e("ds_read_b64_tr_b16 %s, %s offset:%d" % (v(vFr + 4 * j + 2 * p, 2), v(vR + j), p * 8 * D * 2))
    A.e("s_waitcnt lgkmcnt(0)")
    A.e("s_barrier")
    A.e("s_mul_i32 %s, %s, 40" % (s(sT0), s(sKS)))
    A.e("s_add_u32 %s, %s, %s" % (s(sT0), s(sT0), s(sT1)))
    A.e("s_lshl_b32 %s, %s, 10" % (s(sT0), s(sT0)))
    A.e("s_add_u32 %s, %s, %d" % (s(sT0), s(sT0), W2T_OFF))
    for j in range(5):
        if j == 4:
            A.e("s_add_u32 %s, %s, 4096" % (s(sT0), s(sT0)))
        A.e("buffer_store_dwordx4 %s, %s, %s, %s offen offset:%d" %
            (v(vFr + 4 * j, 4), v(vSt), s(S_WS, 4), s(sT0), (j % 4) * 1024))
    A.e("s_add_u32 %s, %s, 32" % (s(sKS), s(sKS)))
    A.e("s_cmp_lt_u32 %s, %d" % (s(sKS), F // 32))
    A.e("s_cbranch_scc1 .Lk1_rt_loop")
    A.label(".Lk1_end")
    A.e("s_endpgm")
    A.vm = []
    A.lg = []


def gen_k2(A):
    KS = F // 32
    NCH = (KS + 3) // 4
    RING = 7
    KS_BYTES = 5 * 1024
    CH_BYTES = 4 * KS_BYTES
    LDS_BYTES = RING * CH_BYTES
    PDA = 12
    NBA = PDA + 1
    A.lds_bytes_k2 = LDS_BYTES
    S_WS, S_B, S_O = 4, 12, 16
    sXCD, sQ, sMT, sNT, sWAVE, sT0, sT1, sN0B = 24, 25, 26, 27, 28, 29, 30, 31
    sA, sB, sSO, sL = 32, 33, 34, 35
    vLANE, vI, vG, vT = 1, 2, 3, 4
    vLO, vLA = 12, 13

    A.l.append(".globl %s" % K2)
    A.l.append(".p2align 8")
    A.l.append(".type %s,@function" % K2)
    A.label(K2)
    A.e("s_cmp_ge_u32 s2, 256")
    A.e("s_cbranch_scc1 .Lk2_end")
    A.stamp(0)
    A.e("s_load_dwordx2 s[4:5], s[0:1], 56")
    A.e("s_load_dwordx2 s[12:13], s[0:1], 32")
    A.e("s_load_dwordx2 s[16:17], s[0:1], 40")
    A.e("s_and_b32 %s, s2, 7" % s(sXCD))
    A.e("s_lshr_b32 %s, s2, 3" % s(sQ))
    A.e("s_lshr_b32 %s, %s, 1" % (s(sMT), s(sXCD)))
    A.e("s_lshl_b32 %s, %s, 3" % (s(sMT), s(sMT)))
    A.e("s_lshr_b32 %s, %s, 2" % (s(sT0), s(sQ)))
    A.e("s_add_u32 %s, %s, %s" % (s(sMT), s(sMT), s(sT0)))
    A.e("s_and_b32 %s, %s, 1" % (s(sNT), s(sXCD)))
    A.e("s_lshl_b32 %s, %s, 2" % (s(sNT), s(sNT)))
    A.e("s_and_b32 %s, %s, 3" % (s(sT0), s(sQ)))
    A.e("s_add_u32 %s, %s, %s" % (s(sNT), s(sNT), s(sT0)))
    A.e("s_mul_i32 %s, %s, 160" % (s(sN0B), s(sNT)))
    A.e("v_lshrrev_b32 %s, 6, v0" % v(vT))
    A.e("v_and_b32 %s, 63, v0" % v(vLANE))
    A.e("s_nop 0")
    A.e("v_readfirstlane_b32 %s, %s" % (s(sWAVE), v(vT)))
    A.e("v_and_b32 %s, 15, %s" % (v(vI), v(vLANE)))
    A.e("v_lshrrev_b32 %s, 4, %s" % (v(vG), v(vLANE)))
    A.e("v_lshlrev_b32 %s, 4, %s" % (v(vLO), v(vLANE)))
    A.e("s_waitcnt lgkmcnt(0)")
    srd(A, S_WS, 56, WS_BYTES)
    srd(A, S_B, 32, D * 2)
    srd(A, S_O, 40, M * D * 2)
    A.e("s_and_b32 %s, %s, 3" % (s(sT1), s(sWAVE)))
    A.e("s_cmp_ge_u32 %s, 4" % s(sWAVE))
    A.e("s_cbranch_scc1 .Lk2_producer")

    A.c("======== consumer: 16-row strip cw, all 80 columns")
    vO, vBI = 14, 15
    vRA, vRB_ = 16, 17
    vBIASRAW = 24
    vBIAS = 34
    vACC = 56
    vFB = 76
    vAF = 136
    sAc = 36
    A.e("v_lshlrev_b32 %s, 3, %s" % (v(vBI), v(vG)))
    A.e("v_add_u32 %s, %s, %s" % (v(vBI), s(sN0B), v(vBI)))
    for nu in range(5):
        A.vmem("buffer_load_dwordx2 %s, %s, %s, 0 offen offset:%d" %
               (v(vBIASRAW + 2 * nu, 2), v(vBI), s(S_B, 4), nu * 32), "bias")
    A.e("v_lshlrev_b32 %s, 6, %s" % (v(vRA), v(vI)))
    A.e("v_lshl_add_u32 %s, %s, 4, %s" % (v(vRA), v(vG), v(vRA)))
    A.e("s_lshl_b32 %s, %s, 2" % (s(sAc), s(sMT)))
    A.e("s_add_u32 %s, %s, %s" % (s(sAc), s(sAc), s(sT1)))
    A.e("s_mul_i32 %s, %s, %d" % (s(sAc), s(sAc), KB_PER_ROWBLK * 1024))

    def a_load(ks):
        A.e("s_add_u32 %s, %s, %d" % (s(sSO), s(sAc), ks * 1024))
        A.vmem("buffer_load_dwordx4 %s, %s, %s, %s offen" %
               (v(vAF + (ks % NBA) * 4, 4), v(vRA), s(S_WS, 4), s(sSO)), ("a", ks))
    for ks in range(PDA):
        a_load(ks)
    A.e("v_mov_b32 %s, %s" % (v(vRB_), v(vLO)))
    for r in range(1, RING):
        A.e("v_add_u32 %s, %d, %s" % (v(vRB_ + r), r * CH_BYTES, v(vRB_)))
    A.e("s_lshl_b32 %s, %s, 6" % (s(sT0), s(sMT)))
    A.e("s_lshl_b32 %s, %s, 4" % (s(sSO), s(sT1)))
    A.e("s_add_u32 %s, %s, %s" % (s(sT0), s(sT0), s(sSO)))
    A.e("v_add_u32 %s, %s, %s" % (v(vO), s(sT0), v(vI)))
    A.e("v_mul_u32_u24 %s, %d, %s" % (v(vO), D * 2, v(vO)))
    A.e("v_add_u32 %s, %s, %s" % (v(vO), v(vBI), v(vO)))
    A.wait_vm({"bias"})
    for nu in range(5):
        for hlf in range(2):
            src = vBIASRAW + 2 * nu + hlf
            A.e("v_lshlrev_b32 %s, 16, %s" % (v(vBIAS + 4 * nu + 2 * hlf), v(src)))
            A.e("v_and_b32 %s, 0xffff0000, %s" % (v(vBIAS + 4 * nu + 2 * hlf + 1), v(src)))

    NB3 = 3

    def rd_ops(ks):
        c = ks // 4
        kk = ks % 4
        slot = c % RING
        sb = kk * KS_BYTES
        buf = ks % NB3
        ops = []
        for nu in range(5):
            ops.append("ds_read_b128 %s, %s offset:%d" % (v(vFB + buf * 20 + nu * 4, 4), v(vRB_ + slot), sb + nu * 1024))
        return ops

    def mfmas(ks, ops):
        buf = ks % NB3
        for nu in range(5):
            acc = vACC + nu * 4
            cop = v(vBIAS + 4 * nu, 4) if ks == 0 else v(acc, 4)
            A.e("v_mfma_f32_16x16x32_bf16 %s, %s, %s, %s" %
                (v(acc, 4), v(vFB + buf * 20 + nu * 4, 4), v(vAF + (ks % NBA) * 4, 4), cop))
            for op in ops[nu:nu + 1]:
                A.lds(op, ("f", ks + 2))
            if nu == 2 and ks + PDA < KS:
                a_load(ks + PDA)

    A.e("s_barrier")
    A.stamp(1)
    for op in rd_ops(0):
        A.lds(op, ("f", 0))
    for op in rd_ops(1):
        A.lds(op, ("f", 1))
    for ks in range(KS):
        if ks % 4 == 0:
            A.c("==== chunk %d" % (ks // 4))
        A.wait_lg({("f", ks)})
        A.wait_vm({("a", ks)})
        nxt = ks + 2
        if nxt < KS:
            if nxt % 4 == 0:
                A.wait_lg()
                A.e("s_barrier")
            mfmas(ks, rd_ops(nxt))
        else:
            mfmas(ks, [])
    A.stamp(2)
    A.c("==== epilogue")
    A.e("s_nop 7")
    A.e("s_nop 7")
    for nu in range(5):
        acc = vACC + nu * 4
        A.e("v_cvt_pk_bf16_f32 %s, %s, %s" % (v(acc), v(acc), v(acc + 1)))
        A.e("v_cvt_pk_bf16_f32 %s, %s, %s" % (v(acc + 1), v(acc + 2), v(acc + 3)))
        A.e("buffer_store_dwordx2 %s, %s, %s, 0 offen offset:%d" % (v(acc, 2), v(vO), s(S_O, 4), nu * 32))
    A.stamp(3)
    if A.instr:
        A.e("s_waitcnt vmcnt(0)")
    A.stamp(4)
    A.dump_stamps(16, 48, 4)
    A.e("s_branch .Lk2_end")
    A.vm = []
    A.lg = []

    A.label(".Lk2_producer")
    A.c("======== producer: pw = sT1 ; loads k-step 4c+pw of chunk c")
    A.e("s_mul_i32 %s, %s, %d" % (s(sA), s(sMT), 4 * KB_PER_ROWBLK))
    A.e("s_add_u32 %s, %s, %s" % (s(sA), s(sA), s(sT1)))
    A.e("s_lshl_b32 %s, %s, 10" % (s(sA), s(sA)))
    A.e("s_mul_i32 %s, %s, 40" % (s(sB), s(sT1)))
    A.e("s_mul_i32 %s, %s, 5" % (s(sT0), s(sNT)))
    A.e("s_add_u32 %s, %s, %s" % (s(sB), s(sB), s(sT0)))
    A.e("s_lshl_b32 %s, %s, 10" % (s(sB), s(sB)))
    A.e("s_add_u32 %s, %s, %d" % (s(sB), s(sB), W2T_OFF))
    A.e("s_mul_i32 %s, %s, %d" % (s(sL), s(sT1), KS_BYTES))

    def p_issue(c):
        slot = c % RING
        partial = (4 * c + 3 >= KS)
        A.c("---- issue chunk %d" % c)
        if partial:
            A.e("s_cmp_ge_u32 %s, %d" % (s(sT1), KS - 4 * c))
            A.e("s_cbranch_scc1 .Lk2_pskip%d" % c)
        for nu in range(5):
            A.e("s_add_u32 m0, %s, %d" % (s(sL), slot * CH_BYTES + nu * 1024))
            A.e("s_add_u32 %s, %s, %d" % (s(sSO), s(sB), c * 4 * 40 * 1024 + nu * 1024))
            A.vmem("buffer_load_dwordx4 %s, %s, %s offen lds" % (v(vLO), s(S_WS, 4), s(sSO)), ("c", c))
        if partial:
            A.label(".Lk2_pskip%d" % c)
            A.vm = [x for x in A.vm if x != ("c", c)]

    p_issue(0)
    p_issue(1)
    p_issue(2)
    for c in range(NCH):
        if 4 * c + 3 >= KS:
            A.e("s_waitcnt vmcnt(0)")
            A.vm = []
        else:
            A.wait_vm({("c", c)})
        A.e("s_barrier")
        if c == 0:
            for cc in range(3, RING):
                p_issue(cc)
        elif c + RING - 1 < NCH:
            p_issue(c + RING - 1)
    A.label(".Lk2_end")
    A.e("s_endpgm")
    A.vm = []
    A.lg = []


def main():
    A = Asm()
    if os.environ.get("INSTR"):
        A.instr = True
        A.instr_wg = int(os.environ["INSTR"])
    gen_k1(A)
    gen_k2(A)
    out = HEADER
    out += "; @launch kernel=%s grid=(256,1,1) block=(512,1,1) lds=%d\n" % (K1, A.lds_bytes_k1)
    out += "; @launch kernel=%s grid=(256,1,1) block=(512,1,1) lds=%d\n" % (K2, A.lds_bytes_k2)
    out += '.amdgcn_target "amdgcn-amd-amdhsa--gfx950"\n.text\n'
    out += A.text()
    out += '.section .rodata,"a"\n.p2align 6\n'
    out += kd(K1, 256, 256)
    out += ".p2align 6\n"
    out += kd(K2, 256, 256)
    path = sys.argv[1] if len(sys.argv) > 1 else OUT
    open(path, "w").write(out)
    print("wrote", path, len(out), "bytes")


if __name__ == "__main__":
    main()
```
